```python
import torch

def _softmax(x, axis=-1):
    return torch.softmax(x, dim=axis)
def _gelu(x):
    return torch.nn.functional.gelu(x, approximate="tanh")
def _silu(x):
    return torch.nn.functional.silu(x)
def _sigmoid(x):
    return torch.sigmoid(x)
def _layernorm(x, axis=-1, eps=1e-5):
    m = x.mean(dim=axis, keepdim=True)
    v = x.var(dim=axis, keepdim=True, unbiased=False)
    return (x - m) / torch.sqrt(v + eps)
def _scatter_add(tgt, idx, src, axis=0):
    return tgt.clone().index_add_(axis, idx, src)
def _segment_sum(src, seg, n):
    out = torch.zeros((n,) + src.shape[1:], dtype=src.dtype)
    return out.index_add_(0, seg, src)
def _pad(x, pw):
    flat = tuple(v for pair in reversed(pw) for v in pair)
    return torch.nn.functional.pad(x, flat)

kernel_name = 'standalone__mha_block_cached__near_ridge'

def setup_inputs():

    _w = (lambda a: (lambda t: t.to(torch.bfloat16) if t.is_floating_point() else t)(torch.as_tensor(a)))
    B, Sq, D = 8, 160, 512
    H, Sk, Dh = 32, 512, 128
    return {
        "x": _w((lambda *s: torch.randn(*s, dtype=torch.bfloat16) * 0.8)(B, Sq, D)),
        "k_cache": _w((lambda *s: torch.randn(*s, dtype=torch.bfloat16) * 0.8)(B, H, Sk, Dh)),
        "v_cache": _w((lambda *s: torch.randn(*s, dtype=torch.bfloat16) * 0.05)(B, H, Sk, Dh)),
        "wq": _w((lambda *s: torch.randn(*s, dtype=torch.bfloat16) * 0.8)(D, H * Dh) * (D ** -0.5)),
        "wo": _w((lambda *s: torch.randn(*s, dtype=torch.bfloat16) * 0.05)(H * Dh, D) * ((H * Dh) ** -0.5)),
    }

def reference(x, k_cache, v_cache, wq, wo):
    B, Sq, D = x.shape
    H, Dh = 32, 128
    q = (lambda x, *d: x.permute(*d))((x @ wq).reshape(B, Sq, H, Dh), 0, 2, 1, 3)
    scores = torch.einsum("bhqd,bhkd->bhqk", q, k_cache) * (Dh ** -0.5)
    p = _softmax(scores, axis=-1)
    o = torch.einsum("bhqk,bhkd->bhqd", p, v_cache)
    return (lambda x, *d: x.permute(*d))(o, 0, 2, 1, 3).reshape(B, Sq, H * Dh) @ wo
```

```python
import re

def R(lo, n=1):
    return list(range(lo, lo + n))
def vr(lo, n=1):
    return f"v{lo}" if n == 1 else f"v[{lo}:{lo+n-1}]"

class I:
    __slots__ = ("text", "kind", "rd", "wr", "srd", "swr", "tag", "cread")
    def __init__(self, text, kind, rd=(), wr=(), srd=(), swr=(), tag=None, cread=()):
        self.text = text; self.kind = kind
        self.rd = list(rd); self.wr = list(wr); self.srd = list(srd); self.swr = list(swr)
        self.tag = tag; self.cread = list(cread)

def mfma32(d, a, b, c):
    cs = "0" if c is None else vr(c, 16)
    return I(f"v_mfma_f32_32x32x16_bf16 {vr(d,16)}, {vr(a,4)}, {vr(b,4)}, {cs}", "mfma32", rd=R(a,4)+R(b,4), wr=R(d,16), cread=[] if c is None else R(c,16))
def mfma16(d, a, b, c):
    cs = "0" if c is None else vr(c, 4)
    return I(f"v_mfma_f32_16x16x32_bf16 {vr(d,4)}, {vr(a,4)}, {vr(b,4)}, {cs}", "mfma16", rd=R(a,4)+R(b,4), wr=R(d,4), cread=[] if c is None else R(c,4))
def _off(o):
    assert 0 <= o < 65536, o
    return f" offset:{o}" if o else ""
def ds_r128(d, a, o=0): return I(f"ds_read_b128 {vr(d,4)}, v{a}{_off(o)}", "dsr", rd=[a], wr=R(d,4))
def ds_r64(d, a, o=0): return I(f"ds_read_b64 {vr(d,2)}, v{a}{_off(o)}", "dsr", rd=[a], wr=R(d,2))
def ds_r32(d, a, o=0): return I(f"ds_read_b32 v{d}, v{a}{_off(o)}", "dsr", rd=[a], wr=[d])
def ds_tr(d, a, o=0): return I(f"ds_read_b64_tr_b16 {vr(d,2)}, v{a}{_off(o)}", "dsr", rd=[a], wr=R(d,2))
def ds_w128(a, s, o=0): return I(f"ds_write_b128 v{a}, {vr(s,4)}{_off(o)}", "dsw", rd=[a]+R(s,4))
def ds_w64(a, s, o=0): return I(f"ds_write_b64 v{a}, {vr(s,2)}{_off(o)}", "dsw", rd=[a]+R(s,2))
def ds_w32(a, s, o=0): return I(f"ds_write_b32 v{a}, v{s}{_off(o)}", "dsw", rd=[a, s])

_TRANS = ("v_exp_f32", "v_rcp_f32", "v_log_f32", "v_rsq_f32", "v_sqrt_f32")
def _regs(tok, pfx):
    tok = tok.strip().lstrip("-")
    m = re.fullmatch(pfx + r"(\d+)", tok)
    if m: return [int(m.group(1))]
    m = re.fullmatch(pfx + r"\[(\d+):(\d+)\]", tok)
    if m: return list(range(int(m.group(1)), int(m.group(2)) + 1))
    return []
def V(text):
    op, rest = text.split(None, 1)
    ops = [t.strip() for t in rest.split(",")]
    ops[-1] = ops[-1].split()[0]
    wr = _regs(ops[0], "v"); swr = _regs(ops[0], "s")
    if ops[0] == "vcc": swr = ["vcc"]
    rd = []; srd = []
    for t in ops[1:]:
        rd += _regs(t, "v"); srd += _regs(t, "s")
        if t == "vcc": srd.append("vcc")
    kind = "valu"
    if op in _TRANS: kind = "trans"
    if op.startswith("v_permlane"):
        kind = "perm"; rd = wr + rd; wr = list(rd)
    if op.startswith("v_readfirstlane") or op.startswith("v_readlane"): kind = "rfl"
    if op.startswith("v_fmac") or op.startswith("v_writelane"): rd = rd + wr
    return I(text, kind, rd=rd, wr=wr, srd=srd, swr=swr)
def S(text):
    op, *rest = text.split(None, 1)
    swr = []; srd = []
    if rest:
        ops = [t.strip() for t in rest[0].split(",")]
        if op.startswith("s_cmp"):
            for t in ops:
                srd += _regs(t, "s")
                if t == "vcc": srd.append("vcc")
        else:
            swr = _regs(ops[0], "s")
            if ops[0] == "m0": swr = ["m0"]
            if ops[0].startswith("exec"): swr = ["exec"]
            for t in ops[1:]:
                srd += _regs(t, "s")
                if t == "vcc": srd.append("vcc")
    return I(text, "salu", srd=srd, swr=swr)
def dma(voff, srd, soff, flags="", tag=None):
    return I(f"buffer_load_dwordx4 v{voff}, s[{srd}:{srd+3}], {soff} offen{flags} lds", "dma", rd=[voff], srd=R(srd,4)+_regs(soff,"s")+["m0"], tag=tag)
def bload(d, n, voff, srd, soff, off=0, flags="", tag=None):
    nm = {1: "dword", 2: "dwordx2", 4: "dwordx4"}[n]
    o = f" offset:{off}" if off else ""
    assert off < 4096
    return I(f"buffer_load_{nm} {vr(d,n)}, v{voff}, s[{srd}:{srd+3}], {soff} offen{o}{flags}", "vld", rd=[voff], wr=R(d,n), srd=R(srd,4)+_regs(soff,"s"), tag=tag)
def bstore(s, n, voff, srd, soff, off=0, flags="", tag=None):
    nm = {1: "dword", 2: "dwordx2", 4: "dwordx4"}[n]
    o = f" offset:{off}" if off else ""
    assert off < 4096
    return I(f"buffer_store_{nm} {vr(s,n)}, v{voff}, s[{srd}:{srd+3}], {soff} offen{o}{flags}", "vst", rd=[voff]+R(s,n), srd=R(srd,4)+_regs(soff,"s"), tag=tag)
def barrier(): return I("s_barrier", "barrier")
def wait_tag(tag): return I("", "waittag", tag=tag)
def wait_lds0(): return I("", "waitlds0")
def wait_vm0(): return I("", "waitvm0")
def raw(text): return I(text, "raw")
def comment(t): return I("; " + t, "comment")

class Stream:
    def __init__(self):
        self.ins = []
    def __call__(self, *xs):
        for x in xs:
            if isinstance(x, (list, tuple)): self(*x)
            elif x is not None: self.ins.append(x)
    def finalize(self):
        out = []
        pos = 0
        lds_seq = 0; lds_pending = {}
        lds_done = 0
        vm_seq = 0; vm_pending = {}; vm_done = 0; tag_last = {}
        last_valu_w = {}; last_trans_w = {}; last_mfma_w = {}; last_mfma_c = {}
        last_sgpr_valu_w = {}; last_m0 = -99; last_store_rd = {}; last_exec_w = -99
        def emit(t, n=1):
            nonlocal pos
            out.append("    " + t); pos += n
        def nop(n):
            while n > 0:
                k = min(n, 16); emit(f"s_nop {k-1}", k); n -= k
        for x in self.ins:
            k = x.kind
            if k == "comment": out.append("    " + x.text); continue
            if k == "waittag":
                n = vm_seq - tag_last[x.tag]
                if tag_last[x.tag] > vm_done:
                    assert n <= 63
                    emit(f"s_waitcnt vmcnt({n})"); vm_done = tag_last[x.tag]
                continue
            if k == "waitlds0":
                if lds_done < lds_seq: emit("s_waitcnt lgkmcnt(0)"); lds_done = lds_seq
                continue
            if k == "waitvm0":
                emit("s_waitcnt vmcnt(0)"); vm_done = vm_seq; continue
            if k == "raw":
                for l in x.text.split("\n"):
                    if l.endswith(":"): out.append(l)
                    else: emit(l)
                continue
            allr = x.rd + x.cread
            need_l = max([lds_pending.get(r, 0) for r in allr + x.wr] + [0])
            need_v = max([vm_pending.get(r, 0) for r in allr + x.wr] + [0])
            w = []
            if need_v > vm_done:
                w.append(f"vmcnt({min(63, vm_seq - need_v)})"); vm_done = need_v
            if need_l > lds_done:
                w.append(f"lgkmcnt({min(15, lds_seq - need_l)})"); lds_done = max(need_l, lds_seq - 15)
            if w: emit("s_waitcnt " + " ".join(w))
            req = 0
            def need(prev, n):
                nonlocal req
                if prev is not None: req = max(req, prev + 1 + n - pos)
            ismf = k in ("mfma32", "mfma16")
            isvalu = k in ("valu", "trans", "perm", "rfl")
            ismem = k in ("dsr", "dsw", "dma", "vld", "vst")
            if ismf:
                for r in allr: need(last_valu_w.get(r), 2)
                for r in x.rd:
                    if r in last_mfma_w: need(last_mfma_w[r][0], 12 if last_mfma_w[r][1] == "mfma32" else 8)
                for r in x.cread + x.wr:
                    if r in last_mfma_w:
                        p, kk, dreg = last_mfma_w[r]
                        exact = (kk == k and x.cread and dreg == x.cread[0] and r in x.cread)
                        if not exact: need(p, 10 if kk == "mfma32" else 6)
                need(last_exec_w, 4)
            if isvalu or ismem:
                for r in x.rd + x.wr:
                    if r in last_mfma_w: need(last_mfma_w[r][0], 12 if last_mfma_w[r][1] == "mfma32" else 8)
            if isvalu or k in ("dsr", "vld"):
                for r in x.wr:
                    if r in last_mfma_c: need(last_mfma_c[r][0], 7 if last_mfma_c[r][1] == "mfma32" else 3)
                    need(last_store_rd.get(r), 2)
            if isvalu and k != "trans":
                for r in x.rd: need(last_trans_w.get(r), 1)
            if ismem:
                for r in x.rd: need(last_trans_w.get(r), 1)
            if k == "perm":
                for r in x.rd: need(last_valu_w.get(r), 2)
            if k == "rfl":
                for r in x.rd: need(last_valu_w.get(r), 1)
            if isvalu:
                for s in x.srd: need(last_sgpr_valu_w.get(s), 2)
            if k in ("dma", "vld", "vst"):
                for s in x.srd: need(last_sgpr_valu_w.get(s), 5)
            if k == "salu":
                for s in x.srd: need(last_sgpr_valu_w.get(s), 2)
            if k == "dma": need(last_m0, 1)
            if req > 0: nop(req)
            p = pos
            emit(x.text)
            if k == "dsr":
                lds_seq += 1
                for r in x.wr: lds_pending[r] = lds_seq
            elif k == "dsw": lds_seq += 1
            elif k in ("dma", "vld", "vst"):
                vm_seq += 1
                for r in x.wr: vm_pending[r] = vm_seq
                if x.tag is not None: tag_last[x.tag] = vm_seq
                if k == "vst":
                    for r in x.rd: last_store_rd[r] = p
            if isvalu:
                for r in x.wr:
                    last_valu_w[r] = p
                    if k == "trans": last_trans_w[r] = p
                    else: last_trans_w.pop(r, None)
                    last_mfma_w.pop(r, None)
                for s in x.swr: last_sgpr_valu_w[s] = p
            if ismf:
                for r in x.wr: last_mfma_w[r] = (p, k, x.wr[0])
                for r in x.cread: last_mfma_c[r] = (p, k)
            if k == "salu":
                if "m0" in x.swr: last_m0 = p
        return "\n".join(out) + "\n"

def interleave(mf, fill, per=None, lead=0):
    out = []
    fill = list(fill)
    n = len(mf)
    for _ in range(min(lead, len(fill))): out.append(fill.pop(0))
    for i, m in enumerate(mf):
        out.append(m)
        k = per if per is not None else -(-len(fill) // (n - i))
        for _ in range(min(k, len(fill))): out.append(fill.pop(0))
    out += fill
    return out
```

```python
import sys, math, struct
from stream import *

KN = "standalone__mha_block_cached__near_ridge_kernel"
HEADER = open("standalone__mha_block_cached__near_ridge.s.ref").read().split("; Override")[0]

SLOT = 16384
RING = [7, 8, 9, 6, 5, 4, 3, 2, 0]
QB = [0, 36864, 73728]
XBYTES = 20480
SCR = 1 * SLOT
SCR_ML = SCR + 8192
SCR_BAD = SCR + 12288
FL_OFF = 0
F2_OFF = 524288
PROF_OFF = 1 << 20
OX_OFF = 2 << 20
PX_OFF = 14 << 20
CSCALE = struct.unpack("<I", struct.pack("<f", (128 ** -0.5) * math.log2(math.e)))[0]
LMAX = 0x4B800000
SPINMAX = 200000
def item_lds(j): return RING[j % 9] * SLOT
sWAVE, sW = 3, 4
SRD_X, SRD_WQ, SRD_K, SRD_V, SRD_WO, SRD_OX, SRD_PX, SRD_OUT, SRD_FL = 24, 28, 32, 36, 40, 44, 48, 52, 56
sG, sB, sI, sH, sROT, sLW = 60, 61, 62, 63, 64, 65
sMODE = 66
sNONCE = 68
sT0, sT1, sT2, sT3 = 5, 6, 7, 70
sCNT = 71
sPROF = 72

class Fam:
    def __init__(self, regs, base=0):
        self.regs = regs; self.base = base
    def at(self, k, absoff, span=0):
        pre = []
        if not (0 <= absoff - self.base and absoff + span - self.base < 65536):
            nb = self.pick(absoff)
            d = nb - self.base
            for r in self.regs:
                pre.append(V(f"v_add_u32 v{r}, {hex(d & 0xffffffff)}, v{r}"))
            self.base = nb
        return pre, self.regs[k], absoff - self.base
    def pick(self, absoff):
        if absoff >= 98304: return 98304
        if absoff >= 32768: return 32768
        return 0
class QFam(Fam):
    def pick(self, absoff):
        return max(q for q in QB if q <= absoff)

class Gen:
    def __init__(self, prof=None, opts=None):
        self.prof = prof or []
        self.o = dict(PD=6, PB=3, stag=0, rot="g2", xflag="", wqflag=" nt", kvflag=" nt", woflag=" nt",
                      flagpos0=40, flagpos1=48, look=3)
        if opts: self.o.update(opts)
        self.tail = []

    def stamp(self, name):
        if name in self.prof:
            k = self.prof.index(name)
            return [raw(f"s_memrealtime s[{sPROF+2*k}:{sPROF+2*k+1}]")]
        return []

    def prologue(self):
        o = self.o
        t = []
        a = t.append
        a("s_cmp_ge_u32 s2, 256")
        a("s_cbranch_scc1 L_end")
        a("s_load_dwordx8 s[8:15], s[0:1], 0")
        a("s_load_dwordx8 s[16:23], s[0:1], 32")
        if "start" in self.prof:
            k = self.prof.index("start"); a(f"s_memrealtime s[{sPROF+2*k}:{sPROF+2*k+1}]")
        a("v_lshrrev_b32 v1, 6, v0")
        a("v_and_b32 v0, 63, v0")
        a(f"v_readfirstlane_b32 s{sWAVE}, v1")
        a(f"s_and_b32 s{sG}, s2, 7")
        a(f"s_lshr_b32 s{sB}, s2, 5")
        a(f"s_lshr_b32 s{sI}, s2, 3")
        a(f"s_and_b32 s{sI}, s{sI}, 3")
        a(f"s_lshl_b32 s{sH}, s{sG}, 2")
        a(f"s_add_u32 s{sH}, s{sH}, s{sI}")
        a(f"s_and_b32 s{sW}, s{sWAVE}, 3")
        a(f"s_lshl_b32 s{sLW}, s{sW}, 10")
        if o["rot"] == "full":
            a(f"s_lshl_b32 s{sROT}, s{sI}, 1"); a(f"s_add_u32 s{sROT}, s{sROT}, s{sB}")
        elif o["rot"] == "g2":
            a(f"s_add_u32 s{sROT}, s{sI}, s{sB}"); a(f"s_and_b32 s{sROT}, s{sROT}, 1"); a(f"s_lshl_b32 s{sROT}, s{sROT}, 2")
        else:
            a(f"s_mov_b32 s{sROT}, 0")
        a(f"s_mov_b64 s[{sMODE}:{sMODE+1}], 0")
        a(f"s_mov_b64 s[{sNONCE}:{sNONCE+1}], 0")
        for s in (SRD_X, SRD_WQ, SRD_K, SRD_V, SRD_WO, SRD_OX, SRD_PX, SRD_OUT, SRD_FL):
            a(f"s_mov_b32 s{s+3}, 0x20000")
        a(f"s_mov_b32 s{SRD_X+2}, 163840")
        a(f"s_mov_b32 s{SRD_K+2}, 131072")
        a(f"s_mov_b32 s{SRD_V+2}, 131072")
        a(f"s_mov_b32 s{SRD_OX+2}, {4*40960}")
        a(f"s_mov_b32 s{SRD_PX+2}, {8*40960}")
        a(f"s_mov_b32 s{SRD_OUT+2}, 163840")
        a(f"s_mov_b32 s{SRD_FL+2}, {F2_OFF + 262144}")
        a(f"s_mul_i32 s{sT0}, s{sB}, 163840")
        a(f"s_lshl_b32 s{sT1}, s{sH}, 8")
        a(f"s_sub_u32 s{SRD_WQ+2}, 0x400000, s{sT1}")
        a(f"s_lshl_b32 s{sT2}, s{sB}, 5")
        a(f"s_add_u32 s{sT2}, s{sT2}, s{sH}")
        a(f"s_lshl_b32 s{sT2}, s{sT2}, 17")
        a("s_waitcnt lgkmcnt(0)")
        def base(srd, p, off):
            a(f"s_add_u32 s{srd}, s{p}, {off}"); a(f"s_addc_u32 s{srd+1}, s{p+1}, 0")
        base(SRD_X, 8, f"s{sT0}")
        base(SRD_WQ, 14, f"s{sT1}")
        base(SRD_K, 10, f"s{sT2}")
        base(SRD_V, 12, f"s{sT2}")
        base(SRD_OUT, 18, f"s{sT0}")
        a(f"s_lshl_b32 s{sT0}, s{sG}, 19")
        a(f"s_lshl_b32 s{sT1}, s{sI}, 8")
        a(f"s_sub_u32 s{SRD_WO+2}, 0x80000, s{sT1}")
        a(f"s_add_u32 s{sT0}, s{sT0}, s{sT1}")
        base(SRD_WO, 16, f"s{sT0}")
        a(f"s_lshl_b32 s{sT0}, s{sB}, 3")
        a(f"s_add_u32 s{sT0}, s{sT0}, s{sG}")
        a(f"s_mul_i32 s{sT0}, s{sT0}, {4*40960}")
        a(f"s_add_u32 s{sT0}, s{sT0}, {OX_OFF}")
        base(SRD_OX, 22, f"s{sT0}")
        a(f"s_lshl_b32 s{sT0}, s{sB}, 2")
        a(f"s_add_u32 s{sT0}, s{sT0}, s{sI}")
        a(f"s_mul_i32 s{sT0}, s{sT0}, {8*40960}")
        a(f"s_add_u32 s{sT0}, s{sT0}, {PX_OFF}")
        base(SRD_PX, 22, f"s{sT0}")
        base(SRD_FL, 22, f"{FL_OFF}")
        a(f"s_cmp_ge_u32 s{sWAVE}, 4")
        a("s_cbranch_scc1 L_helper")
        return "\n".join("    " + x for x in t) + "\n"

    def nonce_load(self, d, vz):
        return [V(f"v_mov_b32 v{vz}, 0"),
                I(f"global_load_dwordx2 {vr(d,2)}, v{vz}, s[20:21] sc1", "vld", rd=[vz], wr=R(d, 2), srd=[20, 21])]
    def nonce_take(self, d, vz, lab):
        L = [V(f"v_readfirstlane_b32 s{sNONCE}, v{d}"), V(f"v_readfirstlane_b32 s{sNONCE+1}, v{d+1}"),
             S(f"s_cmp_lg_u32 s{sNONCE}, 0"), raw(f"s_cbranch_scc0 {lab}_spin\n{lab}_ok:")]
        self.tail.append(f"""{lab}_spin:
    s_mov_b32 s{sCNT}, 0
{lab}_loop:
    v_mov_b32 v{vz}, 0
    global_load_dwordx2 {vr(d,2)}, v{vz}, s[20:21] sc1
    s_waitcnt vmcnt(0)
    v_readfirstlane_b32 s{sNONCE}, v{d}
    v_readfirstlane_b32 s{sNONCE+1}, v{d+1}
    s_nop 4
    s_cmp_lg_u32 s{sNONCE}, 0
    s_cbranch_scc1 {lab}_ok
    s_add_u32 s{sCNT}, s{sCNT}, 1
    s_cmp_lt_u32 s{sCNT}, {SPINMAX}
    s_cbranch_scc1 {lab}_loop
    s_branch {lab}_ok
""")
        return L
    def flag_store(self, voff, d, soff, tag=None):
        return [V(f"v_mov_b32 v{d}, s{sNONCE}"), V(f"v_mov_b32 v{d+1}, s{sNONCE+1}"),
                bstore(d, 2, voff, SRD_FL, soff, flags=" sc1", tag=tag)]
    def poll_issue(self, voff, d, soff):
        return [bload(d, 2, voff, SRD_FL, soff, flags=" sc1")]
    def poll_check(self, voff, d, soff, mask, lab):
        L = [V(f"v_cmp_eq_u64 vcc, s[{sNONCE}:{sNONCE+1}], {vr(d,2)}"),
             S(f"s_cmp_eq_u64 vcc, {mask}"), raw(f"s_cbranch_scc0 {lab}_spin\n{lab}_ok:")]
        L[1].srd.append("vcc")
        self.tail.append(f"""{lab}_spin:
    s_mov_b32 s{sCNT}, 0
{lab}_loop:
    buffer_load_dwordx2 {vr(d,2)}, v{voff}, s[{SRD_FL}:{SRD_FL+3}], {soff} offen sc1
    s_waitcnt vmcnt(0)
    v_cmp_eq_u64 vcc, s[{sNONCE}:{sNONCE+1}], {vr(d,2)}
    s_nop 4
    s_cmp_eq_u64 vcc, {mask}
    s_cbranch_scc1 {lab}_ok
    s_add_u32 s{sCNT}, s{sCNT}, 1
    s_cmp_lt_u32 s{sCNT}, {SPINMAX}
    s_cbranch_scc1 {lab}_loop
    s_branch {lab}_ok
""")
        return L
    def flag_addrs(self, vown, vp1, vp2, tmp):
        L = []
        L.append(V(f"v_mov_b32 v{tmp}, 0xf0000000"))
        L.append(V(f"v_cmp_eq_u32 vcc, 0, v0"))
        L.append(V(f"v_cndmask_b32 v{vown}, v{tmp}, v0, vcc"))
        L.append(S(f"s_add_u32 s{sT0}, s{sI}, 1"))
        L.append(V(f"v_add_u32 v{vp1}, s{sT0}, v0"))
        L.append(V(f"v_and_b32 v{vp1}, 3, v{vp1}"))
        L.append(V(f"v_lshlrev_b32 v{vp1}, 11, v{vp1}"))
        L.append(S(f"s_lshl_b32 s{sT0}, s{sB}, 3")); L.append(S(f"s_add_u32 s{sT0}, s{sT0}, s{sG}"))
        L.append(S(f"s_lshl_b32 s{sT0}, s{sT0}, 13")); L.append(S(f"s_lshl_b32 s{sT1}, s{sWAVE}, 7")); L.append(S(f"s_add_u32 s{sT0}, s{sT0}, s{sT1}"))
        L.append(V(f"v_add_u32 v{vp1}, s{sT0}, v{vp1}"))
        L.append(V(f"v_cmp_gt_u32 vcc, 3, v0"))
        L.append(V(f"v_cndmask_b32 v{vp1}, v{tmp}, v{vp1}, vcc"))
        L.append(V(f"v_lshlrev_b32 v{vp2}, 10, v0"))
        L.append(V(f"v_cmp_gt_u32 vcc, 8, v0"))
        L.append(V(f"v_cndmask_b32 v{vp2}, v{tmp}, v{vp2}, vcc"))
        return L
    def s_f1_own(self, t, dst):
        return [S(f"s_lshl_b32 s{dst}, s{sB}, 5"), S(f"s_add_u32 s{dst}, s{dst}, s{sH}"), S(f"s_lshl_b32 s{dst}, s{dst}, 4"),
                S(f"s_add_u32 s{dst}, s{dst}, s{sWAVE}"), S(f"s_lshl_b32 s{dst}, s{dst}, 7"), S(f"s_add_u32 s{dst}, s{dst}, {t*1024}")]
    def s_f2_base(self, dst):
        return [S(f"s_lshl_b32 s{dst}, s{sB}, 2"), S(f"s_add_u32 s{dst}, s{dst}, s{sI}"), S(f"s_lshl_b32 s{dst}, s{dst}, 13"),
                S(f"s_add_u32 s{dst}, s{dst}, {F2_OFF}")]
    def bad_write(self, vl, vaddr, tmp):
        return [V(f"v_mov_b32 v{tmp}, {hex(LMAX)}"), V(f"v_cmp_nle_f32 vcc, v{vl}, v{tmp}"),
                S("s_cmp_lg_u64 vcc, 0"), S(f"s_cselect_b32 s{sT0}, 1, 0"),
                S(f"s_lshl_b32 s{sT1}, s{sWAVE}, 2"), V(f"v_mov_b32 v{vaddr}, s{sT1}"), V(f"v_mov_b32 v{tmp}, s{sT0}"),
                ds_w32(vaddr, tmp, SCR_BAD), wait_lds0()]
    def bad_read(self, vaddr, d):
        return [V(f"v_and_b32 v{vaddr}, 7, v0"), V(f"v_lshlrev_b32 v{vaddr}, 2, v{vaddr}"), ds_r32(d, vaddr, SCR_BAD)]
    def bad_check(self, d, lab):
        L = [V(f"v_cmp_ne_u32 vcc, 0, v{d}"), S(f"s_andn2_b64 s[{sT1}:{sT2}], vcc, s[{sMODE}:{sMODE+1}]"), raw(f"s_cbranch_scc1 {lab}")]
        return L
    def final_reduce(self, st, vp2, vl16, d, acc, swave_off, sdata_off, lab):
        st(self.poll_issue(vp2, d, f"s{swave_off}"))
        st(self.poll_check(vp2, d, f"s{swave_off}", 255, lab))
        st(self.stamp("sync2"))
        for gg in range(8):
            st(bload(d + 4 * gg, 4, vl16, SRD_PX, f"s{sdata_off}", flags=" sc1"))
            if gg < 7: st(S(f"s_add_u32 s{sdata_off}, s{sdata_off}, 40960"))
        t = acc + 8
        for gg in range(8):
            for k in range(4):
                r = d + 4 * gg + k
                if gg == 0:
                    st(V(f"v_lshlrev_b32 v{acc+2*k}, 16, v{r}"), V(f"v_and_b32 v{acc+2*k+1}, 0xffff0000, v{r}"))
                else:
                    st(V(f"v_lshlrev_b32 v{t}, 16, v{r}"), V(f"v_and_b32 v{t+1}, 0xffff0000, v{r}"),
                       V(f"v_add_f32 v{acc+2*k}, v{acc+2*k}, v{t}"), V(f"v_add_f32 v{acc+2*k+1}, v{acc+2*k+1}, v{t+1}"))
        for k in range(4):
            st(V(f"v_cvt_pk_bf16_f32 v{d+k}, v{acc+2*k}, v{acc+2*k+1}"))
    def prof_dump(self, st, vtmp):
        if not self.prof: return
        st(raw("s_waitcnt lgkmcnt(0)"))
        st(S(f"s_lshl_b32 s{sT0}, s2, 3"), S(f"s_add_u32 s{sT0}, s{sT0}, s{sWAVE}"), S(f"s_lshl_b32 s{sT0}, s{sT0}, 7"),
           S(f"s_add_u32 s{sT0}, s{sT0}, {PROF_OFF}"), V(f"v_mov_b32 v{vtmp}, s{sT0}"))
        for k in range(len(self.prof)):
            st(V(f"v_mov_b32 v{vtmp+1}, s{sPROF+2*k}"))
            st(I(f"global_store_dword v{vtmp}, v{vtmp+1}, s[22:23] offset:{4*k}", "vst", rd=[vtmp, vtmp+1]))

    def main(self):
        o = self.o
        st = Stream()
        QA, QBr, KA = [1, 2, 3, 4], [5, 6, 7, 8], list(range(9, 17))
        vL16, vFOWN, vM, vT0, vT1, vRL, vMT = 17, 18, 19, 20, 21, 22, 23
        ONES, LACC = 24, 28
        FR = 32
        SB = [64, 80]
        QF = 96
        P0 = 128; CIN = 240
        ACC = 128
        BR = [64, 68, 72]
        OACC = [96, 64]
        OF = [96, 112]
        PEER = [192, 208, 224, 240, 64, 80]
        st(raw("L_restart_main:"))
        st(comment("main: address setup"))
        a = lambda s: st(V(s))
        hf, r_, c_, grp, q_ = 32, 33, 34, 35, 36
        a(f"v_lshrrev_b32 v{hf}, 5, v0")
        a(f"v_bfe_u32 v{r_}, v0, 2, 2")
        a(f"v_and_b32 v{c_}, 3, v0")
        a(f"v_bfe_u32 v{grp}, v0, 4, 1")
        a(f"v_and_b32 v{q_}, 31, v0")
        a(f"v_and_b32 v37, 1, v{c_}"); a(f"v_lshrrev_b32 v38, 1, v{c_}"); a(f"v_lshl_or_b32 v37, v37, 1, v38")
        a(f"v_xor_b32 v38, v{grp}, v{hf}"); a(f"v_lshlrev_b32 v38, 5, v38")
        a(f"v_lshl_or_b32 v39, v37, 3, v38")
        a(f"v_lshl_add_u32 v40, v{hf}, 3, v{r_}"); a(f"v_lshl_add_u32 v40, v40, 8, v39")
        for t in range(4):
            a(f"v_xor_b32 v41, {t}, v{r_}"); a(f"v_lshl_add_u32 v{QA[t]}, v41, 6, v40")
        st(S(f"s_lshl_b32 s{sT0}, s{sW}, 5"))
        a(f"v_add_u32 v41, s{sT0}, v{q_}"); a(f"v_lshlrev_b32 v41, 7, v41")
        a(f"v_bfe_u32 v42, v{q_}, 1, 3"); a(f"v_xor_b32 v42, v42, v{hf}")
        for ks in range(4):
            a(f"v_xor_b32 v43, {2*ks}, v42"); a(f"v_lshl_add_u32 v{QBr[ks]}, v43, 4, v41")
        a(f"v_and_b32 v42, 15, v{q_}"); a(f"v_xor_b32 v42, v42, v{hf}")
        a(f"v_lshlrev_b32 v41, 8, v{q_}"); a(f"v_add_u32 v41, 98304, v41")
        for ks in range(8):
            a(f"v_xor_b32 v43, {2*ks}, v42"); a(f"v_lshl_add_u32 v{KA[ks]}, v43, 4, v41")
        a(f"v_lshlrev_b32 v{vL16}, 4, v0")
        a(f"v_bfe_u32 v41, v0, 2, 1"); a(f"v_xor_b32 v41, v41, v{grp}"); a(f"v_or_b32 v41, v41, v{c_}")
        a(f"v_cmp_eq_u32 vcc, 0, v41"); a(f"v_mov_b32 v42, 0x3f803f80")
        for k in range(4): a(f"v_cndmask_b32 v{ONES+k}, 0, v42, vcc")
        st(S(f"s_or_b32 s{sT0}, s2, s{sWAVE}"), S(f"s_or_b32 s{sT0}, s{sT0}, s{sMODE}"), S(f"s_cmp_eq_u32 s{sT0}, 0"), raw("s_cbranch_scc0 L_nononce"))
        st(raw(f"s_memrealtime s[{sT1}:{sT2}]\ns_waitcnt lgkmcnt(0)\ns_or_b32 s{sT1}, s{sT1}, 1\nv_mov_b32 v42, s{sT1}\nv_mov_b32 v43, s{sT2}\nv_mov_b32 v41, 0\n"
               "global_store_dwordx2 v41, v[42:43], s[20:21] sc1\ns_waitcnt vmcnt(0)\nL_nononce:"))

        fQA, fQB = QFam(QA), QFam(QBr)
        fK = Fam(KA, 98304)
        fV = Fam([5, 6]); fW = Fam(QA)
        mf = []
        rd = []
        fill = {}
        pre = {}
        stage_first = []
        stage_name = []
        def F(slot, *xs): fill.setdefault(slot, []).extend(xs)
        def PRE(slot, *xs): pre.setdefault(slot, []).extend(xs)
        def spread(lo, hi, L):
            n = hi - lo + 1
            for i, x in enumerate(L): F(lo + (i * n) // len(L), x)
        fi = 0
        def frag():
            nonlocal fi
            f = FR + 4 * (fi % 8); fi += 1; return f
        def rd_tr(use, stg, fam, k, off0, off1, f):
            def th():
                p, reg, o0 = fam.at(k, off0, off1 - off0)
                return p + [ds_tr(f, reg, o0), ds_tr(f + 2, reg, o0 + off1 - off0)]
            rd.append((use, stg, th))
        def rd_128(use, stg, fam, k, off, f):
            def th():
                p, reg, o0 = fam.at(k, off)
                return p + [ds_r128(f, reg, o0)]
            rd.append((use, stg, th))
        for s in range(8):
            stage_first.append(len(mf)); stage_name.append(f"Q{s}")
            stg = len(stage_first) - 1
            for ks in range(4):
                n = 4 * s + ks
                b = BR[n % 3]
                rd_128(len(mf), stg, fQB, ks, QB[s % 3], b)
                for t in range(4):
                    f = frag()
                    base = QB[s % 3] + XBYTES + 16 * ks * 256
                    rd_tr(len(mf), stg, fQA, t, base, base + 1024, f)
                    mf.append(mfma32(ACC + 16 * t, f, b, None if n == 0 else ACC + 16 * t))
        A0 = len(mf)
        conv = []
        for ks in range(8):
            src = ACC + 8 * ks
            for k in range(8): conv.append(V(f"v_mul_f32 v{src+k}, {hex(CSCALE)}, v{src+k}"))
            for k in range(4): conv.append(V(f"v_cvt_pk_bf16_f32 v{QF+4*ks+k}, v{src+2*k}, v{src+2*k+1}"))
        PRE(A0, *self.stamp("m_qdone"), *conv)
        PRE(A0, S(f"s_cmp_lg_u32 s{sMODE}, 0"), raw("s_cbranch_scc1 L_maxpass_main\nL_maxpass_main_ret:"))
        PRE(A0, *self.nonce_load(vT0, vRL))
        self.tail.append(self.maxpass_main(QF, vMT))
        def softmax_ops(T, sub):
            s = SB[T & 1]; L = []
            for k in range(8):
                for e in (0, 1):
                    x = s + 2 * k + e
                    if sub: L.append(V(f"v_sub_f32 v{x}, v{x}, v{vM}"))
                    L.append(V(f"v_exp_f32 v{x}, v{x}"))
                if k > 0: L.append(V(f"v_cvt_pk_bf16_f32 v{P0+8*T+k-1}, v{s+2*k-2}, v{s+2*k-1}"))
            L.append(V(f"v_cvt_pk_bf16_f32 v{P0+8*T+7}, v{s+14}, v{s+15}"))
            return L
        for T in range(16):
            if T % 2 == 0:
                stage_first.append(len(mf)); stage_name.append(f"K{T//2}")
            stg = len(stage_first) - 1
            m0 = len(mf)
            for ks in range(8):
                f = frag()
                rd_128(len(mf), stg, fK, ks, item_lds(T // 2) + (T & 1) * 8192, f)
                c = SB[T & 1] if ks else (None if T < 2 else CIN)
                mf.append(mfma32(SB[T & 1], f, QF + 4 * ks, c))
            if T == 1:
                s = SB[0]; L = []
                L.append(V(f"v_max3_f32 v{vM}, v{s}, v{s+1}, v{s+2}"))
                for k in range(3, 15, 2): L.append(V(f"v_max3_f32 v{vM}, v{vM}, v{s+k}, v{s+k+1}"))
                L.append(V(f"v_max_f32 v{vM}, v{vM}, v{s+15}"))
                L.append(V(f"v_mov_b32 v{vRL}, v{vM}"))
                L.append(V(f"v_permlane32_swap_b32 v{vRL}, v{vM}"))
                L.append(V(f"v_max_f32 v{vM}, v{vM}, v{vRL}"))
                L.append(V(f"v_cndmask_b32 v{vM}, v{vM}, v{vMT}, s[{sMODE}:{sMODE+1}]"))
                for k in range(16): L.append(V(f"v_sub_f32 v{CIN+k}, 0, v{vM}"))
                spread(m0 + 2, m0 + 7, L + softmax_ops(0, True))
            elif T >= 2:
                spread(m0 + 2, m0 + 7, softmax_ops(T - 1, T == 2))
            if T == 4:
                F(m0, *self.nonce_take(vT0, vRL, "L_nonce_m"))
            if T == 6:
                L = [V(f"v_lshrrev_b32 v7, 5, v0"), V(f"v_bfe_u32 v8, v0, 2, 2"), V(f"v_lshl_add_u32 v5, v7, 2, v8"), V(f"v_lshlrev_b32 v5, 7, v5"),
                     V(f"v_lshrrev_b32 v8, 1, v8"), V(f"v_lshl_add_u32 v5, v8, 6, v5"),
                     V(f"v_bfe_u32 v8, v0, 4, 1"), V(f"v_xor_b32 v8, v8, v7"), V(f"v_lshl_add_u32 v5, v8, 5, v5"),
                     V(f"v_and_b32 v8, 3, v0"), V(f"v_lshl_add_u32 v5, v8, 3, v5"), V(f"v_xor_b32 v6, 64, v5"),
                     V(f"v_lshlrev_b32 v7, 10, v7")]
                F(m0, *L[:7]); F(m0 + 1, *L[7:])
            if T == 7:
                def mk():
                    return [V(f"v_sub_u32 v{x}, v{x}, v7") for x in QA]
                F(m0, *mk())
        B0 = len(mf)
        spread(B0 + 1, B0 + 8, softmax_ops(15, False))
        vP1, vP2 = 7, 8
        for t in range(2):
            for vi in range(4):
                stage_first.append(len(mf)); stage_name.append(f"V{4*t+vi}")
                stg = len(stage_first) - 1
                for ks in range(8):
                    for tp in range(2):
                        f = frag()
                        base = item_lds(8 + 4 * t + vi) + 16 * ks * 128
                        rd_tr(len(mf), stg, fV, tp, base, base + 1024, f)
                        d = OACC[t] + 16 * tp
                        mf.append(mfma32(d, f, P0 + 4 * (8 * vi + ks), None if (vi == 0 and ks == 0) else d))
        for n in range(32):
            F(B0 + 9 + n, mfma16(LACC, ONES, P0 + 4 * n, None if n == 0 else LACC))
        F(B0 + 10, *self.flag_addrs(vFOWN, vP1, vP2, vT0))
        F(B0 + 43, *self.bad_write(LACC, vT0, vT1), V(f"v_rcp_f32 v{vRL}, v{LACC}"))
        H1 = B0 + 64
        F(H1, *self.bad_read(vT0, vT1))
        F(H1 + 3, *self.bad_check(vT1, "L_fallback_main"))
        def epi(t):
            L = []
            for j in range(4):
                src = OACC[t] + 8 * j
                for k in range(8): L.append(V(f"v_mul_f32 v{src+k}, v{src+k}, v{vRL}"))
                for k in range(4): L.append(V(f"v_cvt_pk_bf16_f32 v{OF[t]+4*j+k}, v{src+2*k}, v{src+2*k+1}"))
                if j == 0:
                    L += [S(f"s_mul_i32 s{sT3}, s{sI}, 40960"), S(f"s_lshl_b32 s{sT0}, s{sW}, 12"), S(f"s_add_u32 s{sT3}, s{sT3}, s{sT0}"),
                          S(f"s_add_u32 s{sT3}, s{sT3}, {t*20480}")]
                L.append(bstore(OF[t] + 4 * j, 4, vL16, SRD_OX, f"s{sT3}", off=j * 1024, flags=" sc1", tag=f"O{t}"))
            return L
        spread(H1 + 4, H1 + 19, epi(0))
        F(H1 + o["flagpos0"], *self.s_f1_own(0, sT0), wait_tag("O0"), *self.flag_store(vFOWN, vT0, f"s{sT0}"), *self.stamp("m_flag0"))
        W0 = len(mf)
        for it in range(8):
            stage_first.append(len(mf)); stage_name.append(f"W{it}")
            stg = len(stage_first) - 1
            bsrc = OF[it] if it < 2 else PEER[it - 2]
            for ks in range(4):
                for t in range(4):
                    f = frag()
                    base = item_lds(16 + it) + 16 * ks * 256
                    rd_tr(len(mf), stg, fW, t, base, base + 2048, f)
                    mf.append(mfma32(ACC + 16 * t, f, bsrc + 4 * ks, None if (it == 0 and ks == 0) else ACC + 16 * t))
        def peer_loads(t):
            L = []
            for p in range(3):
                L += [S(f"s_add_u32 s{sT0}, s{sI}, {p+1}"), S(f"s_and_b32 s{sT0}, s{sT0}, 3"), S(f"s_mul_i32 s{sT0}, s{sT0}, 40960"),
                      S(f"s_lshl_b32 s{sT1}, s{sW}, 12"), S(f"s_add_u32 s{sT0}, s{sT0}, s{sT1}"), S(f"s_add_u32 s{sT0}, s{sT0}, {t*20480}")]
                for ks in range(4):
                    L.append(bload(PEER[3 * t + p] + 4 * ks, 4, vL16, SRD_OX, f"s{sT0}", off=ks * 1024, flags=" sc1"))
            return L
        F(W0 - 6, *self.poll_issue(vP1, vT0, "0"))
        spread(W0 + 1, W0 + 12, epi(1))
        F(W0 + 13, *self.poll_check(vP1, vT0, "0", 7, "L_p10m"), *self.stamp("m_sync10"), *peer_loads(0))
        fp1 = W0 + o["flagpos1"]
        F(fp1, *self.s_f1_own(1, sT0), wait_tag("O1"), *self.flag_store(vFOWN, vT0, f"s{sT0}"), *self.stamp("m_flag1"))
        F(W0 + 79, S(f"s_movk_i32 s{sT2}, 1024"), *self.poll_issue(vP1, vT0, f"s{sT2}"), *self.poll_check(vP1, vT0, f"s{sT2}", 7, "L_p11m"),
          *self.stamp("m_sync11"), *peer_loads(1))
        M = len(mf)
        PD, PB = o["PD"], o["PB"]
        opened = 0; ri = 0
        fW_synced = False
        for p in range(-1, M):
            if p >= 0:
                st(pre.get(p, [])); st(mf[p])
            while opened < len(stage_first) and stage_first[opened] - PB <= p + 1 and (ri >= len(rd) or rd[ri][1] >= opened):
                nm = stage_name[opened]
                if nm[0] == "Q" or nm == "K0": st(wait_lds0())
                st(self.stamp("m_pre" + nm)); st(barrier()); st(self.stamp("m_" + nm))
                opened += 1
            cnt = 0
            while ri < len(rd) and rd[ri][0] - PD <= p and rd[ri][1] < opened and (cnt < 2 or rd[ri][0] - 2 <= p):
                if stage_name[rd[ri][1]] == "W0" and not fW_synced:
                    fW.base = fQA.base; fW_synced = True
                st(rd[ri][2]()); ri += 1; cnt += 1
            st(fill.get(p, []))
        assert ri == len(rd) and opened == len(stage_first)
        st(self.stamp("m_p2done"))
        st(S(f"s_mul_i32 s{sT3}, s{sG}, 40960"), S(f"s_lshl_b32 s{sT0}, s{sW}, 13"), S(f"s_add_u32 s{sT3}, s{sT3}, s{sT0}"), S(f"s_add_u32 s{sT2}, s{sT3}, 4096"))
        for f8 in range(8):
            for k in range(4): st(V(f"v_cvt_pk_bf16_f32 v{32+4*f8+k}, v{ACC+8*f8+2*k}, v{ACC+8*f8+2*k+1}"))
            st(bstore(32 + 4 * f8, 4, vL16, SRD_PX, f"s{sT3 if f8 < 4 else sT2}", off=(f8 & 3) * 1024, flags=" sc1"))
        st(barrier())
        st(self.s_f2_base(sT3))
        st(S(f"s_lshl_b32 s{sT0}, s{sG}, 3"), S(f"s_add_u32 s{sT0}, s{sT0}, s{sWAVE}"), S(f"s_lshl_b32 s{sT0}, s{sT0}, 7"), S(f"s_add_u32 s{sT0}, s{sT0}, s{sT3}"))
        a(f"v_and_b32 v{vM}, 31, v0"); a(f"v_lshlrev_b32 v{vM}, 10, v{vM}"); a(f"v_lshrrev_b32 v{vRL}, 5, v0"); a(f"v_lshl_add_u32 v{vM}, v{vRL}, 4, v{vM}")
        st(wait_vm0())
        st(self.flag_store(vFOWN, vT0, f"s{sT0}"))
        st(self.stamp("flag2"))
        st(S(f"s_lshr_b32 s{sT0}, s{sG}, 1"), S(f"s_lshl_b32 s{sT1}, s{sT0}, 7"), S(f"s_add_u32 s{sT3}, s{sT3}, s{sT1}"))
        st(S(f"s_lshl_b32 s{sT1}, s{sG}, 12"), S(f"s_add_u32 s{sT1}, s{sT1}, s{sLW}"))
        self.final_reduce(st, vP2, vL16, 64, 32, sT3, sT1, "L_p2m")
        st(S(f"s_lshl_b32 s{sT0}, s{sT0}, 15"), S(f"s_and_b32 s{sT1}, s{sG}, 1"), S(f"s_lshl_b32 s{sT1}, s{sT1}, 7"), S(f"s_add_u32 s{sT0}, s{sT0}, s{sT1}"),
           S(f"s_lshl_b32 s{sT1}, s{sI}, 8"), S(f"s_add_u32 s{sT0}, s{sT0}, s{sT1}"), S(f"s_lshl_b32 s{sT1}, s{sW}, 5"), S(f"s_add_u32 s{sT0}, s{sT0}, s{sT1}"))
        st(bstore(64, 4, vM, SRD_OUT, f"s{sT0}"))
        st(self.stamp("end"))
        self.prof_dump(st, 40)
        st(raw("s_endpgm"))
        self.tail.append(f"""L_fallback_main:
    s_waitcnt vmcnt(0) lgkmcnt(0)
    s_nop 15
    s_mov_b64 s[{sMODE}:{sMODE+1}], -1
    s_barrier
    s_branch L_restart_main
""")
        self.nbar_main = sum(1 for x in st.ins if x.kind == "barrier")
        return st.finalize()

    def maxpass_main(self, QF, vMT):
        t = ["L_maxpass_main:", "s_nop 7",
             "v_and_b32 v176, 31, v0", "v_lshlrev_b32 v176, 8, v176", "v_lshrrev_b32 v177, 5, v0", "v_lshl_add_u32 v176, v177, 4, v176",
             f"v_mov_b32 v{vMT}, 0xff800000", f"s_mov_b32 s{sCNT}, 0", "L_maxpass_main_loop:"]
        for ks in range(8): t.append(f"buffer_load_dwordx4 v[{128+4*ks}:{131+4*ks}], v176, s[{SRD_K}:{SRD_K+3}], s{sCNT} offen offset:{32*ks}")
        t.append("s_waitcnt vmcnt(0)")
        for ks in range(8): t.append(f"v_mfma_f32_32x32x16_bf16 v[160:175], v[{128+4*ks}:{131+4*ks}], v[{QF+4*ks}:{QF+4*ks+3}], {'0' if ks == 0 else 'v[160:175]'}")
        t.append("s_nop 15")
        for k in range(0, 16, 2): t.append(f"v_max3_f32 v{vMT}, v{vMT}, v{160+k}, v{161+k}")
        t += [f"s_add_u32 s{sCNT}, s{sCNT}, 8192", f"s_cmp_lt_u32 s{sCNT}, 131072", "s_cbranch_scc1 L_maxpass_main_loop",
              f"v_mov_b32 v177, v{vMT}", "s_nop 1", f"v_permlane32_swap_b32 v177, v{vMT}", "s_nop 1", f"v_max_f32 v{vMT}, v{vMT}, v177", "s_nop 7", "s_branch L_maxpass_main_ret"]
        return "\n".join(x if x.endswith(":") else "    " + x for x in t) + "\n"

    def helper(self):
        o = self.o
        st = Stream()
        a = lambda s: st(V(s))
        vX, vWQ, vK, vV, vW = 1, 2, 3, 4, 5
        QA, QBr, KA, VA, WA = [6, 7], [8, 9], [10, 11, 12, 13], [14, 15, 16, 17], list(range(18, 26))
        vL16, vFOWN, vP1, vP2, vM, vMT, vRL, vT0, vT1, vQW, vXW, vXR, vA0, vA1 = 26, 27, 28, 29, 30, 31, 32, 34, 35, 36, 37, 38, 39, 40
        vT2 = 33
        ONES, LACC, CIN = 44, 48, 52
        SD = 56
        FR = 64
        Q4 = 128
        P4 = 144
        ACC = 176
        OF = [208, 212]
        PEER = [216 + 4 * k for k in range(6)]
        XR = 240
        sKB, sZ = 71 - 0, None
        st(raw("L_helper:\ns_setprio 3\nL_restart_helper:"))
        st(comment("helper: DMA source offsets"))
        T = 64
        a(f"v_lshrrev_b32 v{T}, 3, v0"); a(f"v_lshrrev_b32 v{T+1}, 4, v0"); a(f"v_and_b32 v{T+2}, 7, v0"); a(f"v_and_b32 v{T+3}, 15, v0")
        i3, i4, l7, l15 = T, T + 1, T + 2, T + 3
        st(S(f"s_and_b32 s{sT0}, s{sW}, 1"), S(f"s_lshr_b32 s{sT1}, s{sW}, 1"))
        st(S(f"s_lshl_b32 s{sT2}, s{sT0}, 2"))
        a(f"v_or_b32 v{T+4}, s{sT2}, v{i4}"); a(f"v_xor_b32 v{T+4}, v{l7}, v{T+4}")
        st(S(f"s_lshl_b32 s{sT2}, s{sW}, 3"))
        a(f"v_add_u32 v{T+5}, s{sT2}, v{i3}")
        a(f"v_lshlrev_b32 v{vX}, 10, v{T+5}"); a(f"v_lshl_add_u32 v{vX}, v{T+4}, 4, v{vX}")
        st(S(f"s_lshl_b32 s{sT2}, s{sT1}, 1"))
        a(f"v_lshl_or_b32 v{T+4}, v{i4}, 2, s{sT2}"); a(f"v_xor_b32 v{T+4}, v{l15}, v{T+4}")
        st(S(f"s_lshl_b32 s{sT2}, s{sW}, 2"))
        a(f"v_add_u32 v{T+6}, s{sT2}, v{i4}")
        a(f"v_lshlrev_b32 v{vWQ}, 13, v{T+6}"); a(f"v_lshl_add_u32 v{vWQ}, v{T+4}, 4, v{vWQ}")
        def m0set(lds): return [S(f"s_add_u32 s{sT3}, s{sLW}, {lds}"), S(f"s_mov_b32 m0, s{sT3}")]
        sQX, sQW = 96 + 4, 96 + 5
        def dmaQ(s):
            L = []
            first = [S(f"s_add_u32 s{sQX}, s{sROT}, {s}"), S(f"s_and_b32 s{sQX}, s{sQX}, 7"), S(f"s_lshl_b32 s{sQW}, s{sQX}, 19"), S(f"s_lshl_b32 s{sQX}, s{sQX}, 7")]
            order = [("x", 0), ("w", 0), ("x", 1), ("w", 1), ("x", 2), ("w", 2), ("x", 3), ("w", 3), ("x", 4)]
            for kind, jj in order:
                if kind == "x":
                    L.append(first + m0set(QB[s % 3] + jj * 4096) + [S(f"s_add_u32 s{sT2}, s{sQX}, {jj*32768}"), dma(vX, SRD_X, f"s{sT2}", o["xflag"], tag=f"Q{s}")])
                else:
                    L.append(m0set(QB[s % 3] + XBYTES + jj * 4096) + [S(f"s_add_u32 s{sT2}, s{sQW}, {jj*131072}"), dma(vWQ, SRD_WQ, f"s{sT2}", o["wqflag"], tag=f"Q{s}")])
                first = []
            return L
        names = [f"K{i}" for i in range(8)] + [f"V{i}" for i in range(8)] + [f"W{i}" for i in range(8)]
        def dmaI(j):
            L = []
            nm = names[j]; n = int(nm[1:])
            for jj in range(4):
                g = m0set(item_lds(j) + jj * 4096)
                if nm[0] == "K":
                    g += [S(f"s_mov_b32 s{sT2}, {n*16384 + jj*4096}"), dma(vK, SRD_K, f"s{sT2}", o["kvflag"], tag=nm)]
                elif nm[0] == "V":
                    g += [S(f"s_mov_b32 s{sT2}, {(n%4)*32768 + jj*8192 + (n//4)*128}"), dma(vV, SRD_V, f"s{sT2}", o["kvflag"], tag=nm)]
                else:
                    p, t = (0, n) if n < 2 else (1 + (n - 2) % 3, (n - 2) // 3)
                    if jj == 0:
                        g = [S(f"s_add_u32 s{sQX}, s{sI}, {p}"), S(f"s_and_b32 s{sQX}, s{sQX}, 3"), S(f"s_lshl_b32 s{sQX}, s{sQX}, 17")] + g
                    g += [S(f"s_add_u32 s{sT2}, s{sQX}, {(64*t + 16*jj)*1024}"), dma(vW, SRD_WO, f"s{sT2}", o["woflag"], tag=nm)]
                L.append(g)
            return L
        st(dmaQ(0))
        st(S(f"s_and_b32 s{sT0}, s{sW}, 1"), S(f"s_lshr_b32 s{sT1}, s{sW}, 1"))
        a(f"v_xor_b32 v{T+4}, v{l15}, v{T+6}"); a(f"v_lshlrev_b32 v{vK}, 8, v{T+6}"); a(f"v_lshl_add_u32 v{vK}, v{T+4}, 4, v{vK}")
        a(f"v_bfe_u32 v{T+4}, v{i3}, 1, 1"); a(f"v_lshlrev_b32 v{T+4}, 2, v{T+4}"); a(f"v_bfe_u32 v{T+7}, v{i3}, 2, 1"); a(f"v_lshl_or_b32 v{T+4}, v{T+7}, 1, v{T+4}")
        a(f"v_xor_b32 v{T+4}, v{l7}, v{T+4}"); a(f"v_lshlrev_b32 v{vV}, 8, v{T+5}"); a(f"v_lshl_add_u32 v{vV}, v{T+4}, 4, v{vV}")
        st(S(f"s_lshl_b32 s{sT2}, s{sT0}, 1"))
        a(f"v_lshl_or_b32 v{T+4}, v{i4}, 2, s{sT2}"); a(f"v_xor_b32 v{T+4}, v{l15}, v{T+4}")
        a(f"v_lshlrev_b32 v{vW}, 10, v{T+6}"); a(f"v_lshl_add_u32 v{vW}, v{T+4}, 4, v{vW}")
        st(comment("helper: LDS read addresses"))
        kg, q_ = i4, l15
        r_, c_, k1 = T + 8, T + 9, T + 10
        a(f"v_bfe_u32 v{r_}, v0, 2, 2"); a(f"v_and_b32 v{c_}, 3, v0"); a(f"v_and_b32 v{k1}, 1, v{kg}")
        a(f"v_lshl_add_u32 v{T+4}, v{kg}, 3, v{r_}"); a(f"v_lshlrev_b32 v{T+4}, 8, v{T+4}")
        a(f"v_xor_b32 v{T+7}, s{sW}, v{r_}"); a(f"v_lshl_add_u32 v{T+4}, v{T+7}, 6, v{T+4}")
        a(f"v_lshl_add_u32 v{T+4}, v{c_}, 3, v{T+4}"); a(f"v_lshl_add_u32 v{QA[0]}, v{k1}, 5, v{T+4}"); a(f"v_xor_b32 v{QA[1]}, 32, v{QA[0]}")
        a(f"v_lshrrev_b32 v{T+4}, 1, v{q_}"); a(f"v_xor_b32 v{T+4}, v{T+4}, v{kg}")
        a(f"v_lshlrev_b32 v{T+7}, 7, v{q_}"); a(f"v_add_u32 v{T+7}, 16384, v{T+7}")
        a(f"v_lshl_add_u32 v{QBr[0]}, v{T+4}, 4, v{T+7}"); a(f"v_xor_b32 v{QBr[1]}, 64, v{QBr[0]}")
        st(S(f"s_lshl_b32 s{sT2}, s{sT0}, 13"), S(f"s_add_u32 s{sT2}, s{sT2}, 98304"))
        a(f"v_xor_b32 v{T+4}, v{kg}, v{q_}"); a(f"v_lshlrev_b32 v{T+7}, 8, v{q_}"); a(f"v_add_u32 v{T+7}, s{sT2}, v{T+7}")
        a(f"v_lshl_add_u32 v{KA[0]}, v{T+4}, 4, v{T+7}")
        for k in range(1, 4): a(f"v_xor_b32 v{KA[k]}, {64*k}, v{KA[0]}")
        st(S(f"s_lshl_b32 s{sT2}, s{sT0}, 5"))
        a(f"v_lshl_add_u32 v{T+4}, v{kg}, 2, v{r_}"); a(f"v_add_u32 v{T+4}, s{sT2}, v{T+4}")
        a(f"v_lshlrev_b32 v{T+11}, 3, v{c_}"); a(f"v_lshl_add_u32 v{T+11}, v{k1}, 5, v{T+11}")
        a(f"v_lshrrev_b32 v{T+7}, 1, v{r_}"); a(f"v_xor_b32 v{T+7}, s{sT0}, v{T+7}")
        a(f"v_lshl_add_u32 v{T+7}, v{T+7}, 6, v{T+11}"); a(f"v_lshl_add_u32 v{VA[0]}, v{T+4}, 7, v{T+7}")
        for k in range(1, 4): a(f"v_xor_b32 v{VA[k]}, {32*k}, v{VA[0]}")
        st(S(f"s_lshl_b32 s{sT2}, s{sT0}, 1"))
        a(f"v_xor_b32 v{T+7}, s{sT2}, v{r_}"); a(f"v_lshl_add_u32 v{T+7}, v{T+7}, 6, v{T+11}"); a(f"v_lshl_add_u32 v{WA[0]}, v{T+4}, 8, v{T+7}")
        for k in range(1, 8): a(f"v_xor_b32 v{WA[k]}, {32*k}, v{WA[0]}")
        a(f"v_lshlrev_b32 v{vL16}, 4, v0")
        a(f"v_lshrrev_b32 v{T+4}, 1, v{kg}"); a(f"v_lshlrev_b32 v{T+4}, 8, v{T+4}"); a(f"v_lshl_add_u32 v{T+4}, v{q_}, 4, v{T+4}"); a(f"v_lshl_add_u32 v{T+4}, v{k1}, 3, v{T+4}")
        st(S(f"s_lshl_b32 s{sT2}, s{sW}, 11"))
        a(f"v_add_u32 v{vQW}, s{sT2}, v{T+4}")
        for k in range(4): a(f"v_mov_b32 v{ONES+k}, 0x3f803f80")
        st(self.flag_addrs(vFOWN, vP1, vP2, vT0))
        st(dmaQ(1))

        fQA, fQB = QFam(QA), QFam(QBr)
        fK, fV, fW = Fam(KA, 98304), Fam(VA), Fam(WA)
        def tr2(fam, k, off0, off1, f):
            p, reg, o0 = fam.at(k, off0, off1 - off0)
            return p + [ds_tr(f, reg, o0), ds_tr(f + 2, reg, o0 + off1 - off0)]
        def r128(fam, k, off, f):
            p, reg, o0 = fam.at(k, off)
            return p + [ds_r128(f, reg, o0)]
        def bar(nm, lds0=False):
            st(wait_tag(nm))
            if lds0: st(wait_lds0())
            st(self.stamp("h_pre" + nm)); st(barrier()); st(self.stamp("h_" + nm))
        look = o["look"]
        def mix(work, dm):
            work = list(work); dm = list(dm)
            n = max(1, len(dm))
            per = -(-len(work) // n)
            while work or dm:
                if dm: st(dm.pop(0))
                for _ in range(per):
                    if work: st(work.pop(0))
        for s in range(8):
            bar(f"Q{s}", lds0=True)
            mfs = []
            for ks2 in range(2):
                fb = FR + 32 * ks2
                for z in range(2): st(r128(fQB, ks2, QB[s % 3] + z * 2048, fb + 8 + 4 * z))
                for aa in range(2):
                    base = QB[s % 3] + XBYTES + 32 * ks2 * 256
                    st(tr2(fQA, aa, base, base + 1024, fb + 4 * aa))
                for aa in range(2):
                    for z in range(2):
                        d = ACC + 4 * (2 * aa + z)
                        mfs.append(mfma16(d, fb + 4 * aa, fb + 8 + 4 * z, None if (s == 0 and ks2 == 0) else d))
            if s < 6: dm = dmaQ(s + 2)
            elif s == 6: dm = dmaI(0) + dmaI(1)
            else: dm = [x for j in range(2, look) for x in dmaI(j)]
            if s == 7:
                st(mfs)
                for aa in range(2):
                    for z in range(2):
                        d = ACC + 4 * (2 * aa + z)
                        for k in range(4): a(f"v_mul_f32 v{d+k}, {hex(CSCALE)}, v{d+k}")
                        a(f"v_cvt_pk_bf16_f32 v{d}, v{d}, v{d+1}"); a(f"v_cvt_pk_bf16_f32 v{d+1}, v{d+2}, v{d+3}")
                        st(ds_w64(vQW, d, SCR + z * 1024 + aa * 512))
                st(dm)
            else:
                mix(mfs, dm)
        st(S(f"s_lshr_b32 s{sT1}, s{sW}, 1"), S(f"s_lshl_b32 s{sT1}, s{sT1}, 10"))
        a(f"v_add_u32 v{vXR}, s{sT1}, v{vL16}")
        for i in range(8):
            bar(f"K{i}", lds0=(i == 0))
            if i == 0:
                for k in range(4): st(ds_r128(Q4 + 4 * k, vXR, SCR + k * 2048))
                st(wait_lds0())
                st(S(f"s_cmp_lg_u32 s{sMODE}, 0"), raw("s_cbranch_scc1 L_maxpass_helper\nL_maxpass_helper_ret:"))
                self.tail.append(self.maxpass_helper(Q4, vMT))
            work = []
            for aa in range(2):
                for ks2 in range(4):
                    st(r128(fK, ks2, item_lds(i) + aa * 4096, FR + 16 * aa + 4 * ks2))
            for ks2 in range(4):
                for aa in range(2):
                    d = SD + 4 * aa
                    work.append(mfma16(d, FR + 16 * aa + 4 * ks2, Q4 + 4 * ks2, d if ks2 else (None if i == 0 else CIN)))
            post = []
            if i == 0:
                post += [V(f"v_max3_f32 v{vM}, v{SD}, v{SD+1}, v{SD+2}"), V(f"v_max3_f32 v{vM}, v{vM}, v{SD+3}, v{SD+4}"), V(f"v_max3_f32 v{vM}, v{vM}, v{SD+5}, v{SD+6}"),
                         V(f"v_max_f32 v{vM}, v{vM}, v{SD+7}"),
                         V(f"v_mov_b32 v{vT0}, v{vM}"), V(f"v_permlane16_swap_b32 v{vT0}, v{vM}"), V(f"v_max_f32 v{vM}, v{vM}, v{vT0}"),
                         V(f"v_mov_b32 v{vT0}, v{vM}"), V(f"v_permlane32_swap_b32 v{vT0}, v{vM}"), V(f"v_max_f32 v{vM}, v{vM}, v{vT0}"),
                         V(f"v_cndmask_b32 v{vM}, v{vM}, v{vMT}, s[{sMODE}:{sMODE+1}]")]
                post += [V(f"v_sub_f32 v{CIN+k}, 0, v{vM}") for k in range(4)]
                post += [V(f"v_sub_f32 v{SD+k}, v{SD+k}, v{vM}") for k in range(8)]
            post += [V(f"v_exp_f32 v{SD+k}, v{SD+k}") for k in range(8)]
            post += [V(f"v_cvt_pk_bf16_f32 v{P4+4*i+k}, v{SD+2*k}, v{SD+2*k+1}") for k in range(4)]
            post += [mfma16(LACC, ONES, P4 + 4 * i, None if i == 0 else LACC)]
            dm = dmaI(i + look)
            st(dm[0]); st(work); st(dm[1]); st(post); st(dm[2:])
            if i == 1: st(self.nonce_load(vA0 + 1, vT2))
            if i == 5: st(self.nonce_take(vA0 + 1, vT2, "L_nonce_h"))
        st(S(f"s_lshl_b32 s{sT1}, s{sW}, 11"))
        a(f"v_add_u32 v{vXW}, s{sT1}, v{vL16}"); a(f"v_xor_b32 v{vXR}, 2048, v{vXW}")
        def combine(t):
            L = [ds_r128(XR, vXR, SCR), ds_r128(XR + 4, vXR, SCR + 1024)]
            for k in range(8):
                L.append(V(f"v_mul_f32 v{XR+8+k}, v{XR+8+k}, v{vA0}"))
            for k in range(8):
                L.append(V(f"v_fmac_f32 v{XR+8+k}, v{XR+k}, v{vA1}"))
            for k in range(4):
                L.append(V(f"v_cvt_pk_bf16_f32 v{OF[t]+k}, v{XR+8+2*k}, v{XR+8+2*k+1}"))
            L += [S(f"s_mul_i32 s{sT2}, s{sI}, 40960"), S(f"s_add_u32 s{sT2}, s{sT2}, s{sLW}"), S(f"s_add_u32 s{sT2}, s{sT2}, {t*20480 + 16384}"),
                  bstore(OF[t], 4, vL16, SRD_OX, f"s{sT2}", flags=" sc1", tag=f"O{t}")]
            return L
        def send(t):
            L = [V(f"v_mov_b32 v{XR+8+k}, v{ACC+k}") for k in range(8)]
            L += [ds_w128(vXW, ACC + 8, SCR), ds_w128(vXW, ACC + 12, SCR + 1024)]
            return L
        for n in range(8):
            t, vi = n // 4, n % 4
            bar(f"V{n}", lds0=(n in (1, 4)))
            if n == 0:
                st(self.bad_write(LACC, vT0, vT1))
                a(f"v_lshrrev_b32 v{vT0}, 2, v{vXW}")
                st(ds_w32(vT0, vM, SCR_ML), ds_w32(vT0, LACC, SCR_ML + 256))
            if n == 1:
                a(f"v_lshrrev_b32 v{vT0}, 2, v{vXR}")
                st(ds_r32(vA0, vT0, SCR_ML), ds_r32(vA1, vT0, SCR_ML + 256))
                a(f"v_max_f32 v{vT0}, v{vM}, v{vA0}")
                a(f"v_sub_f32 v{vT1}, v{vA0}, v{vT0}"); a(f"v_exp_f32 v{vT1}, v{vT1}")
                a(f"v_sub_f32 v{vT0}, v{vM}, v{vT0}"); a(f"v_exp_f32 v{vT0}, v{vT0}")
                a(f"v_mul_f32 v{vRL}, v{vT1}, v{vA1}"); a(f"v_fmac_f32 v{vRL}, v{vT0}, v{LACC}")
                a(f"v_rcp_f32 v{vRL}, v{vRL}")
                a(f"v_mul_f32 v{vA0}, v{vT0}, v{vRL}"); a(f"v_mul_f32 v{vA1}, v{vT1}, v{vRL}")
            if n == 4:
                st(self.bad_read(vT0, vT1)); st(self.bad_check(vT1, "L_fallback_helper"))
                st(combine(0))
            work = []
            for u in range(2):
                for aa in range(4):
                    base = item_lds(8 + n) + 64 * u * 128
                    f = FR + 16 * u + 4 * aa
                    st(tr2(fV, aa, base, base + 2048, f))
                    work.append(mfma16(ACC + 4 * aa, f, P4 + 4 * (2 * vi + u), None if (vi == 0 and u == 0) else ACC + 4 * aa))
            dm = dmaI(8 + n + look)
            st(dm[0]); st(work)
            if vi == 3: st(send(t))
            st(dm[1:])
            if n == 6:
                st(self.s_f1_own(0, sT0), wait_tag("O0"), self.flag_store(vFOWN, vT0, f"s{sT0}"))
        def peer_loads(t):
            L = []
            for p in range(3):
                L += [S(f"s_add_u32 s{sT0}, s{sI}, {p+1}"), S(f"s_and_b32 s{sT0}, s{sT0}, 3"), S(f"s_mul_i32 s{sT0}, s{sT0}, 40960"),
                      S(f"s_add_u32 s{sT0}, s{sT0}, s{sLW}"), S(f"s_add_u32 s{sT0}, s{sT0}, {t*20480 + 16384}"),
                      bload(PEER[3 * t + p], 4, vL16, SRD_OX, f"s{sT0}", flags=" sc1")]
            return L
        for it in range(8):
            bar(f"W{it}", lds0=(it == 0))
            if it == 0:
                st(combine(1))
                st(self.poll_issue(vP1, vT0, "0"))
            if it == 1:
                st(self.poll_check(vP1, vT0, "0", 7, "L_p10h"), peer_loads(0))
            if it == 3:
                st(self.s_f1_own(1, sT0), wait_tag("O1"), self.flag_store(vFOWN, vT0, f"s{sT0}"))
            if it == 5:
                st(S(f"s_movk_i32 s{sT1}, 1024"), self.poll_issue(vP1, vT0, f"s{sT1}"), self.poll_check(vP1, vT0, f"s{sT1}", 7, "L_p11h"), peer_loads(1))
            work = []
            bsrc = OF[it] if it < 2 else PEER[it - 2]
            for aa in range(8):
                base = item_lds(16 + it)
                f = FR + 4 * aa
                st(tr2(fW, aa, base, base + 4096, f))
                work.append(mfma16(ACC + 4 * aa, f, bsrc, None if it == 0 else ACC + 4 * aa))
            j = 16 + it + look
            dm = dmaI(j) if j < 24 else []
            st(dm); st(work)
        st(S(f"s_lshl_b32 s{sT1}, s{sW}, 12"))
        a(f"v_add_u32 v{vXW}, s{sT1}, v{vL16}"); a(f"v_xor_b32 v{vXR}, 4096, v{vXW}")
        for k in range(4): st(ds_w128(vXW, ACC + 16 + 4 * k, SCR + 1024 * k))
        st(wait_lds0()); st(barrier())
        for k in range(4): st(ds_r128(XR + 4 * k, vXR, SCR + 1024 * k))
        for k in range(16): a(f"v_add_f32 v{ACC+k}, v{ACC+k}, v{XR+k}")
        for k in range(8): a(f"v_cvt_pk_bf16_f32 v{FR+k}, v{ACC+2*k}, v{ACC+2*k+1}")
        st(S(f"s_mul_i32 s{sT3}, s{sG}, 40960"), S(f"s_lshl_b32 s{sT0}, s{sW}, 11"), S(f"s_add_u32 s{sT3}, s{sT3}, s{sT0}"), S(f"s_add_u32 s{sT3}, s{sT3}, 32768"))
        st(bstore(FR, 4, vL16, SRD_PX, f"s{sT3}", flags=" sc1"), bstore(FR + 4, 4, vL16, SRD_PX, f"s{sT3}", off=1024, flags=" sc1"))
        st(self.s_f2_base(sT3))
        st(S(f"s_lshl_b32 s{sT0}, s{sG}, 3"), S(f"s_add_u32 s{sT0}, s{sT0}, s{sWAVE}"), S(f"s_lshl_b32 s{sT0}, s{sT0}, 7"), S(f"s_add_u32 s{sT0}, s{sT0}, s{sT3}"))
        st(wait_vm0())
        st(self.flag_store(vFOWN, vT0, f"s{sT0}"))
        st(self.stamp("flag2"))
        st(S(f"s_cmp_eq_u32 s{sW}, 0"), raw("s_cbranch_scc0 L_hend"))
        st(S(f"s_lshr_b32 s{sT0}, s{sG}, 1"), S(f"s_add_u32 s{sT0}, s{sT0}, 4"), S(f"s_lshl_b32 s{sT1}, s{sT0}, 7"), S(f"s_add_u32 s{sT3}, s{sT3}, s{sT1}"))
        st(S(f"s_lshl_b32 s{sT1}, s{sG}, 10"), S(f"s_add_u32 s{sT1}, s{sT1}, 32768"))
        a(f"v_and_b32 v{vM}, 15, v0"); a(f"v_lshlrev_b32 v{vM}, 10, v{vM}"); a(f"v_lshrrev_b32 v{vRL}, 4, v0"); a(f"v_lshl_add_u32 v{vM}, v{vRL}, 3, v{vM}")
        self.final_reduce(st, vP2, vL16, 64, 128, sT3, sT1, "L_p2h")
        st(S(f"s_lshr_b32 s{sT0}, s{sG}, 2"), S(f"s_lshl_b32 s{sT0}, s{sT0}, 14"), S(f"s_add_u32 s{sT0}, s{sT0}, {128*1024}"),
           S(f"s_and_b32 s{sT1}, s{sG}, 3"), S(f"s_lshl_b32 s{sT1}, s{sT1}, 6"), S(f"s_add_u32 s{sT0}, s{sT0}, s{sT1}"),
           S(f"s_lshl_b32 s{sT1}, s{sI}, 8"), S(f"s_add_u32 s{sT0}, s{sT0}, s{sT1}"))
        st(bstore(64, 2, vM, SRD_OUT, f"s{sT0}"), bstore(66, 2, vM, SRD_OUT, f"s{sT0}", off=32))
        st(raw("L_hend:"))
        st(self.stamp("end"))
        self.prof_dump(st, 40)
        st(raw("s_endpgm"))
        self.tail.append(f"""L_fallback_helper:
    s_waitcnt vmcnt(0) lgkmcnt(0)
    s_nop 15
    s_mov_b64 s[{sMODE}:{sMODE+1}], -1
    s_barrier
    s_branch L_restart_helper
""")
        self.nbar_helper = sum(1 for x in st.ins if x.kind == "barrier")
        return st.finalize()

    def maxpass_helper(self, Q4, vMT):
        t = ["L_maxpass_helper:", "s_nop 7",
             "v_and_b32 v240, 15, v0", "v_lshlrev_b32 v240, 8, v240", "v_lshrrev_b32 v241, 4, v0", "v_lshl_add_u32 v240, v241, 4, v240",
             f"s_and_b32 s{sCNT}, s{sW}, 1", f"s_lshl_b32 s{sCNT}, s{sCNT}, 13",
             f"v_mov_b32 v{vMT}, 0xff800000", "v_add_u32 v241, 4096, v240", "L_maxpass_helper_loop:"]
        for aa in range(2):
            for ks2 in range(4):
                f = 64 + 16 * aa + 4 * ks2
                t.append(f"buffer_load_dwordx4 v[{f}:{f+3}], v{240+aa}, s[{SRD_K}:{SRD_K+3}], s{sCNT} offen offset:{64*ks2}")
        t.append("s_waitcnt vmcnt(0)")
        for aa in range(2):
            for ks2 in range(4):
                f = 64 + 16 * aa + 4 * ks2; d = 244 + 4 * aa
                t.append(f"v_mfma_f32_16x16x32_bf16 v[{d}:{d+3}], v[{f}:{f+3}], v[{Q4+4*ks2}:{Q4+4*ks2+3}], {'0' if ks2 == 0 else f'v[{d}:{d+3}]'}")
        t.append("s_nop 15")
        for k in range(0, 8, 2): t.append(f"v_max3_f32 v{vMT}, v{vMT}, v{244+k}, v{245+k}")
        t += [f"s_add_u32 s{sCNT}, s{sCNT}, 16384", f"s_cmp_lt_u32 s{sCNT}, 131072", "s_cbranch_scc1 L_maxpass_helper_loop",
              f"v_mov_b32 v242, v{vMT}", "s_nop 1", f"v_permlane16_swap_b32 v242, v{vMT}", "s_nop 1", f"v_max_f32 v{vMT}, v{vMT}, v242",
              f"v_mov_b32 v242, v{vMT}", "s_nop 1", f"v_permlane32_swap_b32 v242, v{vMT}", "s_nop 1", f"v_max_f32 v{vMT}, v{vMT}, v242",
              "s_nop 7", "s_branch L_maxpass_helper_ret"]
        return "\n".join(x if x.endswith(":") else "    " + x for x in t) + "\n"

    def build(self):
        s = HEADER
        s += "; Generated by gen/gen.py (hand-written generator): fused Q-projection + attention + output projection.\n"
        s += "; @launch grid=(256,1,1) block=(512,1,1) lds=163840\n"
        s += '.amdgcn_target "amdgcn-amd-amdhsa--gfx950"\n.text\n'
        s += f".globl {KN}\n.p2align 8\n.type {KN},@function\n{KN}:\n"
        s += self.prologue()
        s += self.main()
        s += self.helper()
        assert self.nbar_main == self.nbar_helper, (self.nbar_main, self.nbar_helper)
        s += "".join(self.tail)
        s += "L_end:\n    s_endpgm\n"
        s += f""".section .rodata,"a"
.p2align 6
.amdhsa_kernel {KN}
  .amdhsa_next_free_vgpr 256
  .amdhsa_next_free_sgpr 102
  .amdhsa_accum_offset 256
  .amdhsa_group_segment_fixed_size 0
  .amdhsa_kernarg_size 64
  .amdhsa_user_sgpr_count 2
  .amdhsa_user_sgpr_kernarg_segment_ptr 1
  .amdhsa_system_sgpr_workgroup_id_x 1
.end_amdhsa_kernel
"""
        return s

if __name__ == "__main__":
    out = sys.argv[1] if len(sys.argv) > 1 else "standalone__mha_block_cached__near_ridge.s"
    open(out, "w").write(Gen().build())
    print("wrote", out)
```

```python
import re

def R(lo, n=1):
    return list(range(lo, lo + n))
def vr(lo, n=1):
    return f"v{lo}" if n == 1 else f"v[{lo}:{lo+n-1}]"

class I:
    __slots__ = ("text", "kind", "rd", "wr", "srd", "swr", "tag", "cread")
    def __init__(self, text, kind, rd=(), wr=(), srd=(), swr=(), tag=None, cread=()):
        self.text = text; self.kind = kind
        self.rd = list(rd); self.wr = list(wr); self.srd = list(srd); self.swr = list(swr)
        self.tag = tag; self.cread = list(cread)

def mfma32(d, a, b, c):
    cs = "0" if c is None else vr(c, 16)
    return I(f"v_mfma_f32_32x32x16_bf16 {vr(d,16)}, {vr(a,4)}, {vr(b,4)}, {cs}", "mfma32", rd=R(a,4)+R(b,4), wr=R(d,16), cread=[] if c is None else R(c,16))
def mfma16(d, a, b, c):
    cs = "0" if c is None else vr(c, 4)
    return I(f"v_mfma_f32_16x16x32_bf16 {vr(d,4)}, {vr(a,4)}, {vr(b,4)}, {cs}", "mfma16", rd=R(a,4)+R(b,4), wr=R(d,4), cread=[] if c is None else R(c,4))
def _off(o):
    assert 0 <= o < 65536, o
    return f" offset:{o}" if o else ""
def ds_r128(d, a, o=0): return I(f"ds_read_b128 {vr(d,4)}, v{a}{_off(o)}", "dsr", rd=[a], wr=R(d,4))
def ds_r64(d, a, o=0): return I(f"ds_read_b64 {vr(d,2)}, v{a}{_off(o)}", "dsr", rd=[a], wr=R(d,2))
def ds_r32(d, a, o=0): return I(f"ds_read_b32 v{d}, v{a}{_off(o)}", "dsr", rd=[a], wr=[d])
def ds_tr(d, a, o=0): return I(f"ds_read_b64_tr_b16 {vr(d,2)}, v{a}{_off(o)}", "dsr", rd=[a], wr=R(d,2))
def ds_w128(a, s, o=0): return I(f"ds_write_b128 v{a}, {vr(s,4)}{_off(o)}", "dsw", rd=[a]+R(s,4))
def ds_w64(a, s, o=0): return I(f"ds_write_b64 v{a}, {vr(s,2)}{_off(o)}", "dsw", rd=[a]+R(s,2))
def ds_w32(a, s, o=0): return I(f"ds_write_b32 v{a}, v{s}{_off(o)}", "dsw", rd=[a, s])

_TRANS = ("v_exp_f32", "v_rcp_f32", "v_log_f32", "v_rsq_f32", "v_sqrt_f32")
def _regs(tok, pfx):
    tok = tok.strip().lstrip("-")
    m = re.fullmatch(pfx + r"(\d+)", tok)
    if m: return [int(m.group(1))]
    m = re.fullmatch(pfx + r"\[(\d+):(\d+)\]", tok)
    if m: return list(range(int(m.group(1)), int(m.group(2)) + 1))
    return []
def V(text):
    op, rest = text.split(None, 1)
    ops = [t.strip() for t in rest.split(",")]
    ops[-1] = ops[-1].split()[0]
    wr = _regs(ops[0], "v"); swr = _regs(ops[0], "s")
    if ops[0] == "vcc": swr = ["vcc"]
    rd = []; srd = []
    for t in ops[1:]:
        rd += _regs(t, "v"); srd += _regs(t, "s")
        if t == "vcc": srd.append("vcc")
    kind = "valu"
    if op in _TRANS: kind = "trans"
    if op.startswith("v_permlane"):
        kind = "perm"; rd = wr + rd; wr = list(rd)
    if op.startswith("v_readfirstlane") or op.startswith("v_readlane"): kind = "rfl"
    if op.startswith("v_fmac") or op.startswith("v_writelane"): rd = rd + wr
    return I(text, kind, rd=rd, wr=wr, srd=srd, swr=swr)
def S(text):
    op, *rest = text.split(None, 1)
    swr = []; srd = []
    if rest:
        ops = [t.strip() for t in rest[0].split(",")]
        if op.startswith("s_cmp") or op.startswith("s_bitcmp"):
            for t in ops:
                srd += _regs(t, "s")
                if t == "vcc": srd.append("vcc")
        else:
            swr = _regs(ops[0], "s")
            if ops[0] == "m0": swr = ["m0"]
            if ops[0].startswith("exec"): swr = ["exec"]
            for t in ops[1:]:
                srd += _regs(t, "s")
                if t == "vcc": srd.append("vcc")
    return I(text, "salu", srd=srd, swr=swr)
def dma(voff, srd, soff, flags="", tag=None):
    return I(f"buffer_load_dwordx4 v{voff}, s[{srd}:{srd+3}], {soff} offen{flags} lds", "dma", rd=[voff], srd=R(srd,4)+_regs(soff,"s")+["m0"], tag=tag)
def bload(d, n, voff, srd, soff, off=0, flags="", tag=None):
    nm = {1: "dword", 2: "dwordx2", 4: "dwordx4"}[n]
    o = f" offset:{off}" if off else ""
    assert off < 4096
    return I(f"buffer_load_{nm} {vr(d,n)}, v{voff}, s[{srd}:{srd+3}], {soff} offen{o}{flags}", "vld", rd=[voff], wr=R(d,n), srd=R(srd,4)+_regs(soff,"s"), tag=tag)
def bstore(s, n, voff, srd, soff, off=0, flags="", tag=None):
    nm = {1: "dword", 2: "dwordx2", 4: "dwordx4"}[n]
    o = f" offset:{off}" if off else ""
    assert off < 4096
    return I(f"buffer_store_{nm} {vr(s,n)}, v{voff}, s[{srd}:{srd+3}], {soff} offen{o}{flags}", "vst", rd=[voff]+R(s,n), srd=R(srd,4)+_regs(soff,"s"), tag=tag)
def barrier(): return I("s_barrier", "barrier")
def wait_tag(tag): return I("", "waittag", tag=tag)
def wait_lds0(): return I("", "waitlds0")
def wait_vm0(): return I("", "waitvm0")
def raw(text): return I(text, "raw")
def comment(t): return I("; " + t, "comment")

class Stream:
    def __init__(self):
        self.ins = []
    def __call__(self, *xs):
        for x in xs:
            if isinstance(x, (list, tuple)): self(*x)
            elif x is not None: self.ins.append(x)
    def finalize(self, hoist=False):
        out = []
        last_mf = None
        pos = 0
        lds_seq = 0; lds_pending = {}
        lds_done = 0
        vm_seq = 0; vm_pending = {}; vm_done = 0; tag_last = {}
        last_valu_w = {}; last_trans_w = {}; last_mfma_w = {}; last_mfma_c = {}
        last_sgpr_valu_w = {}; last_m0 = -99; last_store_rd = {}; last_exec_w = -99
        def emit(t, n=1):
            nonlocal pos
            out.append("    " + t); pos += n
        def nop(n):
            while n > 0:
                k = min(n, 16); emit(f"s_nop {k-1}", k); n -= k
        for xi, x in enumerate(self.ins):
            k = x.kind
            if k == "comment": out.append("    " + x.text); continue
            if k == "waittag":
                n = vm_seq - tag_last[x.tag]
                if tag_last[x.tag] > vm_done:
                    assert n <= 63
                    emit(f"s_waitcnt vmcnt({n})"); vm_done = tag_last[x.tag]
                continue
            if k == "waitlds0":
                if lds_done < lds_seq: emit("s_waitcnt lgkmcnt(0)"); lds_done = lds_seq
                continue
            if k == "waitvm0":
                emit("s_waitcnt vmcnt(0)"); vm_done = vm_seq; continue
            if k == "raw":
                if "s_mem" not in x.text: last_mf = None
                for l in x.text.split("\n"):
                    if l.endswith(":"): out.append(l)
                    else: emit(l)
                continue
            allr = x.rd + x.cread
            need_l = max([lds_pending.get(r, 0) for r in allr + x.wr] + [0])
            need_v = max([vm_pending.get(r, 0) for r in allr + x.wr] + [0])
            w = []
            if need_v > vm_done:
                w.append(f"vmcnt({min(63, vm_seq - need_v)})"); vm_done = need_v
            if need_l > lds_done:
                w.append(f"lgkmcnt({min(15, lds_seq - need_l)})"); lds_done = max(need_l, lds_seq - 15)
            if w: emit("s_waitcnt " + " ".join(w))
            req = 0
            def need(prev, n):
                nonlocal req
                if prev is not None: req = max(req, prev + 1 + n - pos)
            ismf = k in ("mfma32", "mfma16")
            isvalu = k in ("valu", "trans", "perm", "rfl")
            ismem = k in ("dsr", "dsw", "dma", "vld", "vst")
            if ismf:
                for r in allr: need(last_valu_w.get(r), 2)
                for r in x.rd:
                    if r in last_mfma_w: need(last_mfma_w[r][0], 12 if last_mfma_w[r][1] == "mfma32" else 8)
                for r in x.cread + x.wr:
                    if r in last_mfma_w:
                        p, kk, dreg = last_mfma_w[r]
                        exact = (kk == k and x.cread and dreg == x.cread[0] and r in x.cread)
                        if not exact: need(p, 10 if kk == "mfma32" else 6)
                need(last_exec_w, 4)
            if isvalu or ismem:
                for r in x.rd + x.wr:
                    if r in last_mfma_w: need(last_mfma_w[r][0], 12 if last_mfma_w[r][1] == "mfma32" else 8)
            if isvalu or k in ("dsr", "vld"):
                for r in x.wr:
                    if r in last_mfma_c: need(last_mfma_c[r][0], 7 if last_mfma_c[r][1] == "mfma32" else 3)
                    need(last_store_rd.get(r), 2)
            if isvalu and k != "trans":
                for r in x.rd: need(last_trans_w.get(r), 1)
            if ismem:
                for r in x.rd: need(last_trans_w.get(r), 1)
            if k == "perm":
                for r in x.rd: need(last_valu_w.get(r), 2)
            if k == "rfl":
                for r in x.rd: need(last_valu_w.get(r), 1)
            if isvalu:
                for s in x.srd: need(last_sgpr_valu_w.get(s), 2)
            if k in ("dma", "vld", "vst"):
                for s in x.srd: need(last_sgpr_valu_w.get(s), 5)
            if k == "salu":
                for s in x.srd: need(last_sgpr_valu_w.get(s), 2)
            if k == "dma": need(last_m0, 1)
            if req > 0: nop(req)
            if ismf and last_mf is not None:
                pos = max(pos, last_mf[0] + (8 if last_mf[1] == "mfma32" else 4))
            p = pos
            emit(x.text)
            if ismf:
                last_mf = (p, k)
                if hoist:
                    written = set()
                    for y in self.ins[xi + 1:]:
                        if y.kind == "raw" and "s_mem" not in y.text: break
                        if y.kind in ("mfma32", "mfma16"):
                            regs = [r for r in y.rd + y.cread if r not in written]
                            nl = max([lds_pending.get(r, 0) for r in regs] + [0])
                            if nl > lds_done:
                                emit(f"s_waitcnt lgkmcnt({min(15, lds_seq - nl)})"); lds_done = max(nl, lds_seq - 15)
                            break
                        written.update(y.wr)
            if k == "dsr":
                lds_seq += 1
                for r in x.wr: lds_pending[r] = lds_seq
            elif k == "dsw": lds_seq += 1
            elif k in ("dma", "vld", "vst"):
                vm_seq += 1
                for r in x.wr: vm_pending[r] = vm_seq
                if x.tag is not None: tag_last[x.tag] = vm_seq
                if k == "vst":
                    for r in x.rd: last_store_rd[r] = p
            if isvalu:
                for r in x.wr:
                    last_valu_w[r] = p
                    if k == "trans": last_trans_w[r] = p
                    else: last_trans_w.pop(r, None)
                    last_mfma_w.pop(r, None)
                for s in x.swr: last_sgpr_valu_w[s] = p
            if ismf:
                for r in x.wr: last_mfma_w[r] = (p, k, x.wr[0])
                for r in x.cread: last_mfma_c[r] = (p, k)
            if k == "salu":
                if "m0" in x.swr: last_m0 = p
        return "\n".join(out) + "\n"

def interleave(mf, fill, per=None, lead=0):
    out = []
    fill = list(fill)
    n = len(mf)
    for _ in range(min(lead, len(fill))): out.append(fill.pop(0))
    for i, m in enumerate(mf):
        out.append(m)
        k = per if per is not None else -(-len(fill) // (n - i))
        for _ in range(min(k, len(fill))): out.append(fill.pop(0))
    out += fill
    return out
```

```python
import sys, math, struct
from stream import *

KN = "standalone__mha_block_cached__near_ridge_kernel"
HEADER = open("standalone__mha_block_cached__near_ridge.s.ref").read().split("; Override")[0]

SLOT = 16384
RING = [7, 8, 9, 6, 5]
WDED = [0, 2, 3, 4]
QB = [0, 37120, 74240]
WQSH = 8200
XBYTES = 20480
SCR = 1 * SLOT
SCR_ML = SCR + 8192
SCR_BAD = SCR + 12288
FL_OFF = 0
F2_OFF = 65536
PROF_OFF = 1 << 20
OX_OFF = 2 << 20
PX_OFF = 14 << 20
CSCALE = struct.unpack("<I", struct.pack("<f", (128 ** -0.5) * math.log2(math.e)))[0]
LMAX = 0x4B800000
SPINMAX = 200000
def item_slot(j):
    if j < 16: return RING[j % 5]
    if j < 20: return WDED[j - 16]
    return RING[(j - 4) % 5]
def item_lds(j): return item_slot(j) * SLOT
sWAVE, sW = 3, 4
SRD_X, SRD_WQ, SRD_K, SRD_V, SRD_WO, SRD_OX, SRD_PX, SRD_OUT, SRD_FL = 24, 28, 32, 36, 40, 44, 48, 52, 56
sG, sB, sI, sH, sROT, sLW = 60, 61, 62, 63, 64, 65
sJ, sO = 57, 58
sMODE = 66
sNONCE = 68
sT0, sT1, sT2, sT3 = 5, 6, 7, 70
sCNT = 71
sPROF = 72

class Fam:
    def __init__(self, regs, base=0):
        self.regs = regs; self.base = base
    def at(self, k, absoff, span=0):
        pre = []
        if not (0 <= absoff - self.base and absoff + span - self.base < 65536):
            nb = self.pick(absoff)
            d = nb - self.base
            for r in self.regs:
                pre.append(V(f"v_add_u32 v{r}, {hex(d & 0xffffffff)}, v{r}"))
            self.base = nb
        return pre, self.regs[k], absoff - self.base
    def pick(self, absoff):
        if absoff >= 147456: return 98304
        if absoff >= 81920: return 81920
        if absoff >= 65536: return 32768
        return 0
class QFam(Fam):
    def pick(self, absoff):
        return max(q for q in QB if q <= absoff)

class Gen:
    def __init__(self, prof=None, opts=None):
        self.prof = prof or []
        self.o = dict(PD=7, PDmin=4, e0n=30, qov=2, wcs=1, PB=5, PG=2, PB2=7, cap=3, rot="alth3", xflag="", wqflag="", kvflag=" nt", woflag="",
                      look=4, lookq=9, dep=(6,8,3), looks=dict(V2=6,V3=8,V4=8,V5=8), depth=0, depth_from=3, depth_to=24, hoist=1, sm0=1, hprio=3, HD=2, X0="V7", yb=12, xc=28, yd=66, bf=8, wearly=0, codepf=1, tlb=0, wper=2, wpf=0, wpf0=0, wstart=3, wsoff=0, stf=' sc1', ldf=' sc1', outf='', sent=0, tm=2, holdw=1, e0st=9, stag=0, stagk=2, stagpos=4, wburst=1, krot=1, hsoft=2, zb=-1, hx=(2,3), ls0=10, ls1=6, jsh=1, osh=0, wint=0, vflag=1, pf0='K0', pfstep=4, wc='Q2')
        if opts: self.o.update(opts)
        self.tail = []

    def stamp(self, name):
        if name in self.prof:
            k = self.prof.index(name)
            return [raw(f"{self.o.get('clk','s_memrealtime')} s[{sPROF+2*k}:{sPROF+2*k+1}]")]
        return []

    def prologue(self):
        o = self.o
        t = []
        a = t.append
        a("s_cmp_ge_u32 s2, 256")
        a("s_cbranch_scc1 L_end")
        a("s_load_dwordx8 s[8:15], s[0:1], 0")
        a("s_load_dwordx8 s[16:23], s[0:1], 32")
        if "start" in self.prof:
            k = self.prof.index("start"); a(f"{self.o.get('clk','s_memrealtime')} s[{sPROF+2*k}:{sPROF+2*k+1}]")
        a("v_lshrrev_b32 v1, 6, v0")
        a("v_and_b32 v0, 63, v0")
        a(f"v_readfirstlane_b32 s{sWAVE}, v1")
        if o.get("map") == "b":
            a(f"s_and_b32 s{sB}, s2, 7")
            a(f"s_lshr_b32 s{sG}, s2, 5")
        elif o.get("map") == "x":
            a(f"s_lshr_b32 s{sB}, s2, 5")
            a(f"s_lshr_b32 s{sG}, s2, 3")
            a(f"s_add_u32 s{sG}, s{sG}, s2")
            a(f"s_and_b32 s{sG}, s{sG}, 7")
        else:
            a(f"s_and_b32 s{sG}, s2, 7")
            a(f"s_lshr_b32 s{sB}, s2, 5")
        a(f"s_lshr_b32 s{sI}, s2, 3")
        if o.get("ishift"): a(f"s_add_u32 s{sI}, s{sI}, {o['ishift']}")
        a(f"s_and_b32 s{sI}, s{sI}, 3")
        a(f"s_lshl_b32 s{sH}, s{sG}, 2")
        a(f"s_add_u32 s{sH}, s{sH}, s{sI}")
        a(f"s_add_u32 s{sJ}, s{sI}, {o['jsh']}"); a(f"s_and_b32 s{sJ}, s{sJ}, 3")
        a(f"s_add_u32 s{sO}, s{sI}, {o['osh']}"); a(f"s_and_b32 s{sO}, s{sO}, 3")
        a(f"s_and_b32 s{sW}, s{sWAVE}, 3")
        a(f"s_lshl_b32 s{sLW}, s{sW}, 10")
        a(f"s_mov_b64 s[{sMODE}:{sMODE+1}], 0")
        a(f"s_mov_b64 s[{sNONCE}:{sNONCE+1}], 0")
        a(f"s_cmp_lt_u32 s{sWAVE}, 4")
        a("s_cbranch_scc1 L_main")
        return "\n".join("    " + x for x in t) + "\n"
    def srd(self, which):
        L = []
        a = lambda x: L.append(S(x))
        def base(srd, p, off, size):
            a(f"s_add_u32 s{srd}, s{p}, {off}"); a(f"s_addc_u32 s{srd+1}, s{p+1}, 0")
            if size is not None: a(f"s_mov_b32 s{srd+2}, {size}")
            a(f"s_mov_b32 s{srd+3}, 0x20000")
        if which == "X":
            a(f"s_mul_i32 s{sT0}, s{sB}, 163840"); base(SRD_X, 8, f"s{sT0}", 163840)
        elif which == "OUT":
            a(f"s_mul_i32 s{sT0}, s{sB}, 163840"); base(SRD_OUT, 18, f"s{sT0}", 163840)
        elif which == "WQ":
            a(f"s_lshl_b32 s{sT0}, s{sH}, 8"); a(f"s_sub_u32 s{SRD_WQ+2}, 0x400000, s{sT0}"); base(SRD_WQ, 14, f"s{sT0}", None)
        elif which in ("K", "V"):
            a(f"s_lshl_b32 s{sT0}, s{sB}, 5"); a(f"s_add_u32 s{sT0}, s{sT0}, s{sH}"); a(f"s_lshl_b32 s{sT0}, s{sT0}, 17")
            if self.o.get("samekv"): a(f"s_and_b32 s{sT0}, s{sT0}, 0x60000")
            base(SRD_K if which == "K" else SRD_V, 10 if which == "K" else 12, f"s{sT0}", 131072)
        elif which == "WO":
            a(f"s_lshl_b32 s{sT0}, s{sG}, 19"); a(f"s_lshl_b32 s{sT1}, s{sJ}, {6 if self.o['wint'] else 8}"); a(f"s_sub_u32 s{SRD_WO+2}, 0x80000, s{sT1}")
            a(f"s_add_u32 s{sT0}, s{sT0}, s{sT1}"); base(SRD_WO, 16, f"s{sT0}", None)
        elif which == "OX":
            a(f"s_lshl_b32 s{sT0}, s{sB}, 3"); a(f"s_add_u32 s{sT0}, s{sT0}, s{sG}"); a(f"s_mul_i32 s{sT0}, s{sT0}, {4*40960}")
            a(f"s_add_u32 s{sT0}, s{sT0}, {OX_OFF + self.o['wsoff']}"); base(SRD_OX, 22, f"s{sT0}", 4*40960)
        elif which == "PX":
            a(f"s_lshl_b32 s{sT0}, s{sB}, 2"); a(f"s_add_u32 s{sT0}, s{sT0}, s{sJ}"); a(f"s_mul_i32 s{sT0}, s{sT0}, {8*40960}")
            a(f"s_add_u32 s{sT0}, s{sT0}, {PX_OFF + self.o['wsoff']}"); base(SRD_PX, 22, f"s{sT0}", 8*40960)
        elif which == "FL":
            base(SRD_FL, 22, f"{FL_OFF}", F2_OFF + 32768)
        return L

    def spin(self, lab, load, test):
        return f"""s_mov_b32 s{sCNT}, 0
{lab}_loop:
{load}
s_waitcnt lgkmcnt(0)
{test}
s_cbranch_scc1 {lab}_ok
s_add_u32 s{sCNT}, s{sCNT}, 1
s_cmp_lt_u32 s{sCNT}, {SPINMAX}
s_cbranch_scc1 {lab}_loop
{lab}_ok:"""
    def h0(self, lab, text):
        return raw(f"s_cmp_eq_u32 s{sW}, 0\ns_cbranch_scc0 {lab}_skip\n{text}\n{lab}_skip:")
    def flag_txt(self, soff_code, off=0):
        return soff_code + f"\ns_atomic_swap_x2 s[{sNONCE}:{sNONCE+1}], s[22:23], s{sT0}" + (f" offset:{off}" if off else "")
    def flag_set(self, lab, soff_code):
        if self.o["vflag"]:
            return self.h0(lab, soff_code + f"\nv_mov_b32 v41, s{sT0}\nv_mov_b32 v42, s{sNONCE}\nv_mov_b32 v43, s{sNONCE+1}\ns_mov_b64 exec, 1\n"
                           f"global_store_dwordx2 v41, v[42:43], s[22:23] sc1\ns_mov_b64 exec, -1")
        return self.h0(lab, self.flag_txt(soff_code))
    def poll_txt(self, lab, sregs, offs):
        regs = [8, 10, 12, 14, 16, 18, 24, 26][:len(offs)]
        load = "\n".join(f"s_load_dwordx2 s[{r}:{r+1}], s[22:23], s{sr} offset:{of} glc" for r, sr, of in zip(regs, sregs, offs))
        test = "\n".join(f"s_xor_b64 s[{r}:{r+1}], s[{r}:{r+1}], s[{sNONCE}:{sNONCE+1}]" for r in regs) + "\n"
        test += "\n".join(f"s_or_b64 s[8:9], s[8:9], s[{r}:{r+1}]" for r in regs[1:]) + "\ns_cmp_eq_u64 s[8:9], 0"
        return self.spin(lab, load, test)
    def poll16_txt(self, lab, sreg):
        R0 = 24
        load = f"s_load_dwordx16 s[{R0}:{R0+15}], s[22:23], s{sreg} glc"
        test = "\n".join(f"s_xor_b64 s[{r}:{r+1}], s[{r}:{r+1}], s[{sNONCE}:{sNONCE+1}]" for r in range(R0, R0 + 16, 2)) + "\n"
        test += "\n".join(f"s_or_b64 s[{R0}:{R0+1}], s[{R0}:{R0+1}], s[{r}:{r+1}]" for r in range(R0 + 2, R0 + 16, 2)) + f"\ns_cmp_eq_u64 s[{R0}:{R0+1}], 0"
        return self.spin(lab, load, test)
    def early_issue(self, lab):
        return self.h0(lab, self.f1_own(0) + f"\nv_add_u32 v58, 1, v0\nv_lshlrev_b32 v58, 8, v58\nv_xor_b32 v58, s{sT0}, v58\ns_mov_b64 exec, 7\n"
                       "global_load_dwordx2 v[60:61], v58, s[22:23] sc1\ns_mov_b64 exec, -1")
    def poll1(self, lab, t, early=None):
        code = ""
        if early is not None:
            code = (f"s_waitcnt vmcnt({early})\nv_cmp_eq_u64 vcc, s[{sNONCE}:{sNONCE+1}], v[60:61]\ns_nop 1\ns_and_b32 s{sT0}, vcc_lo, 7\n"
                    f"s_cmp_eq_u32 s{sT0}, 7\ns_cbranch_scc1 {lab}_skip\n")
        code += self.f1_own(0) + f"\ns_xor_b32 s{sT1}, s{sT0}, 0x200\ns_xor_b32 s{sT2}, s{sT0}, 0x300\ns_xor_b32 s{sT0}, s{sT0}, 0x100\n"
        return self.h0(lab, code + self.poll_txt(lab, [sT0, sT1, sT2], [128 * t] * 3))
    def nonce_issue(self):
        return raw(f"s_load_dwordx2 s[{sNONCE}:{sNONCE+1}], s[20:21], 0")
    def nonce_get(self, lab):
        return raw(f"s_waitcnt lgkmcnt(0)\ns_cmp_lg_u32 s{sNONCE}, 0\ns_cbranch_scc1 {lab}_ok\n" +
                   self.spin(lab, f"s_load_dwordx2 s[{sNONCE}:{sNONCE+1}], s[20:21], 0 glc", f"s_cmp_lg_u32 s{sNONCE}, 0"))
    def f1_own(self, t):
        return f"s_lshl_b32 s{sT0}, s{sB}, 5\ns_add_u32 s{sT0}, s{sT0}, s{sH}\ns_lshl_b32 s{sT0}, s{sT0}, 8\ns_add_u32 s{sT0}, s{sT0}, {FL_OFF + t*128}"
    def f2_grp(self, dst):
        return f"s_lshl_b32 s{dst}, s{sB}, 2\ns_add_u32 s{dst}, s{dst}, s{sJ}\ns_lshl_b32 s{dst}, s{dst}, 12\ns_add_u32 s{dst}, s{dst}, {FL_OFF + F2_OFF}"
    def bad_write(self, vl, vaddr, tmp):
        return [V(f"v_mov_b32 v{tmp}, {hex(LMAX)}"), V(f"v_cmp_nle_f32 vcc, v{vl}, v{tmp}"),
                S("s_cmp_lg_u64 vcc, 0"), S(f"s_cselect_b32 s{sT0}, 1, 0"),
                S(f"s_lshl_b32 s{sT1}, s{sWAVE}, 2"), V(f"v_mov_b32 v{vaddr}, s{sT1}"), V(f"v_mov_b32 v{tmp}, s{sT0}"),
                ds_w32(vaddr, tmp, SCR_BAD)]
    def bad_read(self, vaddr, d):
        return [V(f"v_and_b32 v{vaddr}, 3, v0"), V(f"v_lshlrev_b32 v{vaddr}, 2, v{vaddr}"), ds_r32(d, vaddr, SCR_BAD)]
    def bad_check(self, d, lab):
        if self.o.get("hskip") or self.o.get("mskip") or self.o.get("fake16"): return []
        return [V(f"v_cmp_ne_u32 vcc, 0, v{d}"), S(f"s_andn2_b64 s[{sT1}:{sT2}], vcc, s[{sMODE}:{sMODE+1}]"), raw(f"s_cbranch_scc1 {lab}")]
    def final_reduce(self, st, vl16, d, acc, sdata_off, lab):
        sen = self.o["sent"]
        if sen: st(raw(f"s_mov_b32 s{sCNT}, 0\n{lab}_retry:"))
        for gg in range(8):
            st(S(f"s_add_u32 s{sT2}, s{sdata_off}, {40960*gg}"))
            st(bload(d + 4 * gg, 4, vl16, SRD_PX, f"s{sT2}", flags=self.o["ldf"]))
        t = acc + 8; mx = acc + 10
        for gg in range(8):
            r = d + 4 * gg
            if sen:
                if gg == 0: st(V(f"v_max3_u32 v{mx}, v{r}, v{r+1}, v{r+2}"), V(f"v_max_u32 v{mx}, v{mx}, v{r+3}"))
                else: st(V(f"v_max3_u32 v{mx}, v{mx}, v{r}, v{r+1}"), V(f"v_max3_u32 v{mx}, v{mx}, v{r+2}, v{r+3}"))
                if gg == 7:
                    st(V(f"v_cmp_eq_u32 vcc, -1, v{mx}"), S(f"s_add_u32 s{sCNT}, s{sCNT}, 1"), S(f"s_cmp_lt_u32 s{sCNT}, {SPINMAX}"),
                       S(f"s_cselect_b64 s[{sMODE}:{sMODE+1}], vcc, 0"), S(f"s_cmp_lg_u64 s[{sMODE}:{sMODE+1}], 0"), raw(f"s_cbranch_scc1 {lab}_retry"))
            for k in range(4):
                r = d + 4 * gg + k
                if gg == 0:
                    st(V(f"v_lshlrev_b32 v{acc+2*k}, 16, v{r}"), V(f"v_and_b32 v{acc+2*k+1}, 0xffff0000, v{r}"))
                else:
                    st(V(f"v_lshlrev_b32 v{t}, 16, v{r}"), V(f"v_and_b32 v{t+1}, 0xffff0000, v{r}"),
                       V(f"v_add_f32 v{acc+2*k}, v{acc+2*k}, v{t}"), V(f"v_add_f32 v{acc+2*k+1}, v{acc+2*k+1}, v{t+1}"))
        for k in range(4):
            st(V(f"v_cvt_pk_bf16_f32 v{d+k}, v{acc+2*k}, v{acc+2*k+1}"))
    def prof_dump(self, st, vtmp, who="m"):
        if not self.prof: return
        if self.o.get("diag"):
            if who != "m": return
            kind, K = self.o["diag"]
            t = "s_waitcnt lgkmcnt(0)\n"
            if kind == "fixed": t += f"s_add_u32 s{sT0}, s{sPROF}, {K}\n"
            elif kind == "k": t += f"s_sub_u32 s{sT0}, s{sPROF+2}, s{sPROF}\ns_mul_i32 s{sT0}, s{sT0}, {K}\ns_add_u32 s{sT0}, s{sT0}, s{sPROF}\n"
            else:
                t += f"s_sub_u32 s{sT0}, s{sPROF+2}, s{sPROF}\ns_mul_i32 s{sT0}, s{sT0}, {K}\ns_memrealtime s[{sT1}:{sT2}]\ns_waitcnt lgkmcnt(0)\ns_add_u32 s{sT0}, s{sT0}, s{sT1}\n"
            t += f"L_diag:\ns_memrealtime s[{sT1}:{sT2}]\ns_waitcnt lgkmcnt(0)\ns_sub_u32 s{sT1}, s{sT1}, s{sT0}\ns_cmp_lt_i32 s{sT1}, 0\ns_cbranch_scc1 L_diag"
            st(raw(t)); return
        st(raw("s_waitcnt lgkmcnt(0)"))
        st(S(f"s_lshl_b32 s{sT0}, s2, 3"), S(f"s_add_u32 s{sT0}, s{sT0}, s{sWAVE}"), S(f"s_lshl_b32 s{sT0}, s{sT0}, 7"),
           S(f"s_add_u32 s{sT0}, s{sT0}, {PROF_OFF}"), V(f"v_mov_b32 v{vtmp}, s{sT0}"))
        for k in range(len(self.prof)):
            st(V(f"v_mov_b32 v{vtmp+1}, s{sPROF+2*k}"))
            st(I(f"global_store_dword v{vtmp}, v{vtmp+1}, s[22:23] offset:{4*k}", "vst", rd=[vtmp, vtmp+1]))

    def fixfrag(self, d):
        return [V(f"v_permlane32_swap_b32 v{d}, v{d+2}"), V(f"v_permlane32_swap_b32 v{d+1}, v{d+3}"),
                V(f"v_permlane16_swap_b32 v{d}, v{d+2}"), V(f"v_permlane16_swap_b32 v{d+1}, v{d+3}")]
    def main(self):
        o = self.o
        st = Stream()
        WA, KA, VA = list(range(1, 9)), [9, 10, 11, 12], [13, 14, 15, 16]
        QA = [69, 70, 71, 72]
        vL16 = 17; vM = [18, 19]; vRL = vM; vMT = [13, 14]; vX = [15, 16]
        vT0, vT1 = 9, 10
        ONES, LACC = 20, [24, 28]
        FR = 32
        SB = [64, 80]
        QF = 96
        P0 = 128; CIN = [248, 252]
        ACC = 128; ACC4 = 192
        BR = [208, 216]; B4 = [224, 232]
        QBr, QB4, vQW = [64, 65], [66, 67], 68
        OACC = [96, 64]
        OF = [96, 112]
        PEER = [192, 208, 224, 240, 64, 80]
        U = 2
        a = lambda s: st(V(s))
        st(raw("L_main:"))
        if o["codepf"]:
            st(raw(f"s_getpc_b64 s[{sT1}:{sT2}]\nL_pc:\ns_sub_u32 s{sT1}, s{sT1}, L_pc-{KN}\ns_subb_u32 s{sT2}, s{sT2}, 0"))
            st(S(f"s_lshr_b32 s{sT0}, s2, 3"), S(f"s_lshl_b32 s{sT0}, s{sT0}, 2"), S(f"s_add_u32 s{sT0}, s{sT0}, s{sW}"), S(f"s_lshl_b32 s{sT0}, s{sT0}, 9"))
            a(f"v_and_b32 v40, 7, v0"); a(f"v_lshlrev_b32 v40, 6, v40"); a(f"v_add_u32 v40, s{sT0}, v40")
            st(raw(f"v_min_u32 v40, L_end-{KN}, v40"))
            st(I(f"global_load_dword v41, v40, s[{sT1}:{sT2}]", "vld", rd=[40], wr=[41]))
        st(raw("s_waitcnt lgkmcnt(0)"))
        st(self.srd("K"), self.srd("OX"), self.srd("PX"), self.srd("OUT"))
        st(S(f"s_or_b32 s{sT0}, s2, s{sWAVE}"), S(f"s_cmp_eq_u32 s{sT0}, 0"), raw("s_cbranch_scc0 L_nononce"))
        st(raw(f"s_memrealtime s[{sT1}:{sT2}]\ns_waitcnt lgkmcnt(0)\ns_or_b32 s{sT1}, s{sT1}, 1\nv_mov_b32 v44, s{sT1}\nv_mov_b32 v45, s{sT2}\nv_mov_b32 v46, 0\n"
               "global_store_dwordx2 v46, v[44:45], s[20:21] sc1\nL_nononce:"))
        st(wait_vm0())
        st(raw("L_restart_main:"))
        st(comment("main: address setup"))
        kg, r_, c_, k1, q_ = 32, 33, 34, 35, 36
        a(f"v_lshrrev_b32 v{kg}, 4, v0"); a(f"v_bfe_u32 v{r_}, v0, 2, 2"); a(f"v_and_b32 v{c_}, 3, v0"); a(f"v_bfe_u32 v{k1}, v0, 4, 1"); a(f"v_and_b32 v{q_}, 15, v0")
        a(f"v_lshrrev_b32 v37, 1, v{kg}"); a(f"v_lshl_add_u32 v37, v37, 3, v{r_}"); a(f"v_lshlrev_b32 v37, 8, v37")
        a(f"v_xor_b32 v38, s{sW}, v{r_}"); a(f"v_lshl_add_u32 v37, v38, 6, v37"); a(f"v_lshl_add_u32 v37, v{c_}, 4, v37")
        a(f"v_mul_u32_u24 v38, {WQSH}, v{k1}"); a(f"v_add_u32 v{QA[0]}, v37, v38")
        for t in range(1, 4): a(f"v_xor_b32 v{QA[t]}, {64*t}, v{QA[0]}")
        a(f"v_lshrrev_b32 v37, 2, v0"); a(f"v_lshlrev_b32 v37, 8, v37"); a(f"v_lshl_add_u32 v37, v{r_}, 6, v37"); a(f"v_lshl_add_u32 v37, v{k1}, 5, v37")
        a(f"v_lshl_add_u32 v{WA[0]}, v{c_}, 3, v37")
        for t in range(1, 8): a(f"v_xor_b32 v{WA[t]}, {32*t}, v{WA[0]}")
        a(f"v_lshrrev_b32 v37, 1, v{q_}"); a(f"v_xor_b32 v37, v37, v{kg}"); a(f"v_lshlrev_b32 v37, 4, v37"); a(f"v_lshl_add_u32 v37, v{q_}, 7, v37")
        st(S(f"s_lshl_b32 s{sT0}, s{sW}, 12"))
        a(f"v_add_u32 v{QBr[0]}, s{sT0}, v37"); a(f"v_xor_b32 v{QBr[1]}, 64, v{QBr[0]}")
        a(f"v_add_u32 v{QB4[0]}, 16384, v37"); a(f"v_xor_b32 v{QB4[1]}, 64, v{QB4[0]}")
        st(S(f"s_lshl_b32 s{sT0}, s{sW}, 2"))
        a(f"v_add_u32 v37, s{sT0}, v{kg}"); a(f"v_xor_b32 v37, v37, v{q_}"); a(f"v_lshlrev_b32 v37, 4, v37"); a(f"v_lshl_add_u32 v37, v{q_}, 8, v37")
        a(f"v_add_u32 v{KA[0]}, 98304, v37")
        for k in range(1, 4): a(f"v_xor_b32 v{KA[k]}, {64*k}, v{KA[0]}")
        a(f"v_lshlrev_b32 v{vL16}, 4, v0")
        st(S(f"s_lshl_b32 s{sT0}, s{sW}, 11"))
        a(f"v_add_u32 v{vQW}, s{sT0}, v{vL16}")
        for k in range(4): a(f"v_mov_b32 v{ONES+k}, 0x3f803f80")

        fQA, fQB, fQ4 = QFam(QA), QFam(QBr), QFam(QB4)
        fK = Fam(KA, 98304)
        fV = Fam(VA, 98304); fW = Fam(WA)
        mf = []; rd = []; fill = {}; pre = {}
        bars = []
        def F(slot, *xs): fill.setdefault(slot, []).extend(xs)
        def spread(lo, hi, L):
            n = hi - lo + 1
            for i, x in enumerate(L): F(lo + (i * n) // len(L), x)
        fi = 0; flast = {}
        def frag():
            nonlocal fi
            f = FR + 4 * (fi % 8); fi += 1; return f
        def rd1(use, bi, fam, k, off, ctor, d):
            rd.append((use, bi, fam, k, off, ctor, d, flast.get(d & ~3, -9)))
        def rd_tr(use, bi, fam, k, off0, off1, f):
            rd1(use, bi, fam, k, off0, ds_tr, f); rd1(use, bi, fam, k, off1, ds_tr, f + 2)
        def M16(d, fa, fb, c):
            flast[fa] = len(mf); flast[fb] = len(mf)
            mf.append(mfma16(d, fa, fb, c))
        def newbar(slot, name, prei=(), post=()):
            bars.append([slot, name, list(prei), list(post)]); return len(bars) - 1
        PD, PB, PB2 = o["PD"] * U, o["PB"] * U, o["PB2"] * U
        for s in range(8):
            bi = newbar(len(mf) - PB - 1, f"Q{s}", [wait_lds0()])
            for ks in range(2):
                n = 2 * s + ks
                b, b4 = BR[n % 2], B4[n % 2]
                base = QB[s % 3] + XBYTES + ks * 4096
                for t in range(8):
                    f = frag()
                    if t == 0: rd1(len(mf), bi, fQB, ks, QB[s % 3], ds_r128, b)
                    rd_tr(len(mf), bi, fQA, t >> 1, base + 8 * (t & 1), base + 8 * (t & 1) + 1024, f)
                    if t == 0:
                        rd1(len(mf) + 1, bi, fQB, ks, QB[s % 3] + 2048, ds_r128, b + 4)
                        for z in range(2): rd1(len(mf) + 2 + z, bi, fQ4, ks, QB[s % 3] + 2048 * z, ds_r128, b4 + 4 * z)
                    for z in range(2):
                        d = ACC + 16 * (t >> 1) + 8 * z + 4 * (t & 1)
                        M16(d, f, b + 4 * z, None if n == 0 else d)
                    if t < 2:
                        for z in range(2):
                            d = ACC4 + 8 * z + 4 * t
                            M16(d, f, b4 + 4 * z, None if n == 0 else d)
        A0 = len(mf)
        def qconv(j, pk):
            src, dst = (ACC4 + 8 * j, 240 + 4 * j) if j < 2 else (ACC + 8 * (j - 2), QF + 4 * (j - 2))
            if pk: L = [V(f"v_pk_mul_f32 v[{src+k}:{src+k+1}], v[{src+k}:{src+k+1}], s[{sT1}:{sT2}]") for k in range(0, 8, 2)]
            else: L = [V(f"v_mul_f32 v{src+k}, s{sT1}, v{src+k}") for k in range(8)]
            L += [V(f"v_cvt_pk_bf16_f32 v{dst+k}, v{src+2*k}, v{src+2*k+1}") for k in range(4)]
            if j < 2: L.append(ds_w128(vQW, dst, SCR + 1024 * j))
            return L
        F(A0 - 14, S(f"s_mov_b32 s{sT1}, {hex(CSCALE)}"), S(f"s_mov_b32 s{sT2}, {hex(CSCALE)}"))
        nov = o["qov"]
        if nov: spread(A0 - 11, A0 - 2, [x for j in range(nov) for x in qconv(j, False)])
        conv = [x for j in range(nov, 10) for x in qconv(j, True)]
        self.tail.append(self.maxpass_main(QF, vMT))
        def softmax_ops(T, sub):
            s = SB[T & 1]; E = []; C = []
            for k in range(16):
                E.append(([V(f"v_sub_f32 v{s+k}, v{s+k}, v{vM[k>>3]}")] if sub else []) + [V(f"v_exp_f32 v{s+k}, v{s+k}")])
            for k in range(8): C.append(V(f"v_cvt_pk_bf16_f32 v{P0+8*T+k}, v{s+2*k}, v{s+2*k+1}"))
            return E, C
        def flat_softmax(T, sub):
            E, C = softmax_ops(T, sub); L = []
            for k in range(8):
                L += E[2 * k] + E[2 * k + 1]
                if k: L.append(C[k - 1])
            return L + [C[7]]
        def rowsum(TT):
            return [mfma16(LACC[z], ONES, P0 + 8 * TT + 4 * z, None if TT == 0 else LACC[z]) for z in range(2)]
        for T in range(16):
            if T == 0:
                bi = newbar(A0 - 1, "K0", self.stamp("m_qdone") + [self.nonce_issue()] + conv + [wait_lds0()],
                            [S(f"s_cmp_lg_u32 s{sMODE}, 0"), raw("s_cbranch_scc1 L_maxpass_main\nL_maxpass_main_ret:")])
            elif T % 2 == 0:
                bi = newbar(len(mf) - PB2 - 1, f"K{T//2}")
            m0 = len(mf)
            for s_ in range(4):
                for aa in range(2):
                    f = frag()
                    rd1(len(mf), bi, fK, s_, item_lds(T // 2) + (T & 1) * 8192 + aa * 4096, ds_r128, f)
                    for z in range(2):
                        d = SB[T & 1] + 8 * z + 4 * aa
                        M16(d, f, QF + 8 * s_ + 4 * z, d if s_ else (None if T < 2 else CIN[z]))
            if T == 1:
                s = SB[0]; L = []
                for z in range(2):
                    x = s + 8 * z
                    L += [V(f"v_max3_f32 v{vM[z]}, v{x}, v{x+1}, v{x+2}"), V(f"v_max3_f32 v{vM[z]}, v{vM[z]}, v{x+3}, v{x+4}"),
                          V(f"v_max3_f32 v{vM[z]}, v{vM[z]}, v{x+5}, v{x+6}"), V(f"v_max_f32 v{vM[z]}, v{vM[z]}, v{x+7}")]
                for sw in (16, 32):
                    L += [V(f"v_mov_b32 v{vX[z]}, v{vM[z]}") for z in range(2)] + [S("s_nop 0")]
                    L += [V(f"v_permlane{sw}_swap_b32 v{vX[z]}, v{vM[z]}") for z in range(2)]
                    L += [V(f"v_max_f32 v{vM[z]}, v{vM[z]}, v{vX[z]}") for z in range(2)]
                L += [V(f"v_cndmask_b32 v{vM[z]}, v{vM[z]}, v{vMT[z]}, s[{sMODE}:{sMODE+1}]") for z in range(2)]
                L += [V(f"v_sub_f32 v{CIN[z]+k}, 0, v{vM[z]}") for z in range(2) for k in range(4)]
                spread(m0 + 1, m0 + 15, L + flat_softmax(0, True))
            elif T >= 2:
                E, C = softmax_ops(T - 1, T == 2); r = rowsum(T - 2)
                for gp in range(8):
                    if gp: F(m0 + 2 * gp, C[gp - 1])
                    if gp in (1, 5): F(m0 + 2 * gp + 1, *E[2 * gp], r[gp >> 2], *E[2 * gp + 1])
                    else: F(m0 + 2 * gp + 1, *E[2 * gp], *E[2 * gp + 1])
                F(m0 + 15, S("s_nop 0"), C[7])
            if 3 <= T <= 8:
                L = [V(f"v_lshrrev_b32 v13, 2, v0"), V(f"v_lshlrev_b32 v13, 7, v13"), V(f"v_bfe_u32 v14, v0, 3, 1"), V(f"v_lshl_add_u32 v13, v14, 6, v13"),
                     V(f"v_bfe_u32 v14, v0, 4, 1"), V(f"v_lshl_add_u32 v13, v14, 5, v13"), V(f"v_and_b32 v14, 3, v0"), V(f"v_lshl_add_u32 v13, v14, 3, v13"),
                     V(f"v_add_u32 v13, 98304, v13"), V(f"v_xor_b32 v14, 32, v13"), V(f"v_xor_b32 v15, 64, v13"), V(f"v_xor_b32 v16, 0x60, v13")]
                F(m0, *L[2 * (T - 3): 2 * (T - 3) + 2])
        B0 = len(mf)
        spread(B0 + 1, B0 + 40, flat_softmax(15, False))
        F(B0, *rowsum(14)); F(B0 + 43, *rowsum(15))
        for t in range(2):
            for vi in range(4):
                nm = f"V{4*t+vi}"
                bi = newbar(len(mf) - PB2 - 1, nm, [wait_tag("O0")] if o["X0"] == nm else [])
                for ks in range(4):
                    for aa in range(4):
                        f = frag()
                        base = item_lds(8 + 4 * t + vi) + 32 * ks * 128
                        rd_tr(len(mf), bi, fV, aa, base, base + 2048, f)
                        for z in range(2):
                            d = OACC[t] + 16 * (aa >> 1) + 8 * z + 4 * (aa & 1)
                            M16(d, f, P0 + 8 * (4 * vi + ks) + 4 * z, None if (vi == 0 and ks == 0) else d)
        spread(B0 + 48, B0 + 60, [V(f"v_rcp_f32 v{vRL[z]}, v{LACC[z]}") for z in range(2)] + [V(f"v_add_f32 v{LACC[0]}, v{LACC[0]}, v{LACC[1]}")] +
               self.bad_write(LACC[0], vT0, vT1))
        H1 = B0 + 128
        F(H1 - 6, *self.bad_read(vT0, vT1))
        F(H1, *self.bad_check(vT1, "L_fallback_main"))
        def epi(t):
            L = []
            for j in range(4):
                src = OACC[t] + 8 * j
                for k in range(8): L.append(V(f"v_mul_f32 v{src+k}, v{src+k}, v{vRL[j&1]}"))
                for k in range(4): L.append(V(f"v_cvt_pk_bf16_f32 v{OF[t]+4*j+k}, v{src+2*k}, v{src+2*k+1}"))
                if j == 0:
                    L += [[S(f"s_mul_i32 s{sT3}, s{sO}, 40960"), S(f"s_lshl2_add_u32 s{sT3}, s{sLW}, s{sT3}"), S(f"s_add_u32 s{sT3}, s{sT3}, {t*20480}")]]
                L.append(bstore(OF[t] + 4 * j, 4, vL16, SRD_OX, f"s{sT3}", off=j * 1024, flags=self.o["stf"], tag=f"O{t}"))
            return L
        L0 = epi(0)
        isst = lambda x: not isinstance(x, list) and x.kind == "vst"
        e0n = o["e0n"]
        spread(H1 + 1, H1 + e0n, [x for x in L0 if not isst(x)])
        for k, x in enumerate([x for x in L0 if isst(x)]): F(H1 + max(o["e0st"] * U + k, 2 + ((k + 1) * e0n + 3) // 4), x)
        W0 = len(mf)
        def peer_loads(t, slot, step):
            for p in range(3):
                L = [S(f"s_add_u32 s{sT0}, s{sO}, {p+1}"), S(f"s_and_b32 s{sT0}, s{sT0}, 3"), S(f"s_mul_i32 s{sT0}, s{sT0}, 40960"),
                     S(f"s_lshl2_add_u32 s{sT0}, s{sLW}, s{sT0}"), S(f"s_add_u32 s{sT0}, s{sT0}, {t*20480}")]
                F(slot + step * p, *L)
                for ks in range(4):
                    F(slot + step * p + (2 * ks if (p and step >= 8) else 0), bload(PEER[3 * t + p] + 4 * ks, 4, vL16, SRD_OX, f"s{sT0}", off=ks * 1024, flags=self.o["ldf"]))
        ba = newbar(W0 - PB2 - 1, "W0", [wait_tag("O0")] if o["X0"] == "W0" else [])
        newbar(W0 + o["zb"] * U, "Z")
        bb = newbar(W0 + o["yb"] * U, "Y0"); peer_loads(0, W0 + o["yb"] * U, o["ls0"] * U)
        bc = newbar(W0 + o["xc"] * U, "X1", [wait_tag("O1")])
        bd = newbar(W0 + o["yd"] * U, "Y1"); peer_loads(1, W0 + o["yd"] * U, o["ls1"] * U)
        tm = o["tm"]
        assert o["yd"] + 2 * o["ls1"] + 4 < 127 - 16 * max(tm, 1)
        assert o["yb"] >= 12 and o["yb"] < 30 and o["yd"] < 78 and o["xc"] < 62
        order = [(it, ks, aa) for it in range(8 - tm) for ks in range(2) for aa in range(8)]
        order += [(it, ks, 2 * t + a2) for t in (0, 2, 1, 3) for it in range(8 - tm, 8) for ks in range(2) for a2 in range(2)]
        def pstore(t):
            L = []
            for j in range(2):
                src = ACC + 16 * t + 8 * j; dst = ACC + 16 * t + 4 * j
                L += [V(f"v_cvt_pk_bf16_f32 v{dst+k}, v{src+2*k}, v{src+2*k+1}") for k in range(4)]
                L.append(bstore(dst, 4, vL16, SRD_PX, f"s{sT3 if t < 2 else sT2}", off=((2 * t + j) & 3) * 1024, flags=o["stf"], tag="PA" if t in (0, 2) else "PB"))
            return L
        for it, ks, aa in order:
            bi = ba if it < 2 else (bb if it < 4 else (bc if it == 4 else bd))
            bsrc = OF[it] if it < 2 else PEER[it - 2]
            f = frag()
            base = item_lds(16 + it) + 32 * ks * 256
            rd_tr(len(mf), bi, fW, aa, base, base + 4096, f)
            for z in range(2):
                d = ACC + 16 * (aa >> 1) + 8 * z + 4 * (aa & 1)
                M16(d, f, bsrc + 8 * ks + 4 * z, None if (it == 0 and ks == 0) else d)
            if it == 7 and ks == 1 and aa & 1 and aa != 7 and tm:
                spread(len(mf) + 1, len(mf) + 8 * tm - 3, pstore(aa >> 1))
        F(W0 + 255 - 32 * max(tm, 1), S(f"s_mul_i32 s{sT3}, s{sG}, 40960"), S(f"s_lshl_b32 s{sT0}, s{sW}, 13"), S(f"s_add_u32 s{sT3}, s{sT3}, s{sT0}"), S(f"s_add_u32 s{sT2}, s{sT3}, 4096"))
        spread(W0 + 1, W0 + 23, epi(1))
        M = len(mf)
        newbar(M - 1 - o["bf"] * U, "BF")
        nxt_same = {}; last = {}
        for ix in range(len(rd) - 1, -1, -1):
            reg = rd[ix][2].regs[rd[ix][3]]
            nxt_same[ix] = last.get(reg); last[reg] = ix
        rbase = {}
        for fam in (fQA, fQB, fQ4, fK, fV, fW):
            for r in fam.regs: rbase[r] = fam.base
        qend = {bi: bars[bi + 1][0] - o["PG"] * U for bi in range(7)}
        opened = 0; ri = 0
        for p in range(-2, M):
            if p >= 0: st(mf[p])
            cnt = 0; tailf = []
            while ri < len(rd) and rd[ri][1] < opened and rd[ri][7] <= p:
                use, bi, fam, k, off, ctor, d, _ = rd[ri]
                left = sum(1 for x in rd[ri:ri + 48] if x[1] == bi)
                urgent = use - 2 <= p or (bi in qend and left > qend[bi] - p) or (use - o["PDmin"] * U <= p and cnt < 2)
                if not (urgent or (cnt < 1 and (use - PD <= p or bi in qend))): break
                if cnt >= 2 and not use - 2 <= p: break
                reg = fam.regs[k]
                if any(reg in x.wr for x in tailf):
                    st(tailf); tailf = []
                assert 0 <= off - rbase[reg] < 65536, (reg, off, rbase[reg])
                st(ctor(d, reg, off - rbase[reg]))
                nx = nxt_same[ri]
                if nx is not None and not (0 <= rd[nx][4] - rbase[reg] < 65536):
                    nb = rd[nx][2].pick(rd[nx][4])
                    tailf.append(V(f"v_add_u32 v{reg}, {hex((nb - rbase[reg]) & 0xffffffff)}, v{reg}")); rbase[reg] = nb
                ri += 1; cnt += 1
            st(tailf)
            while opened < len(bars) and bars[opened][0] <= p:
                _, nm, prei, post = bars[opened]
                if nm[0] == "Q" or nm == "K0": assert ri >= len(rd) or rd[ri][1] >= opened, (nm, p)
                st(prei); st(self.stamp("m_pre" + nm)); st(barrier()); st(self.stamp("m_" + nm)); st(post)
                opened += 1
                if nm == "K0":
                    for _ in range(4):
                        use, bi, fam, k, off, ctor, d, _ = rd[ri]
                        st(ctor(d, fam.regs[k], off - rbase[fam.regs[k]])); ri += 1
            st(fill.get(p, []))
        assert ri == len(rd) and opened == len(bars)
        st(self.stamp("m_p2done"))
        for t in ((3,) if tm else (0, 2, 1, 3)): st(pstore(t))
        st(self.nonce_get("L_nonce_m"))
        vO = 18
        a(f"v_and_b32 v{vO}, 15, v0"); a(f"v_lshlrev_b32 v{vO}, 10, v{vO}"); a(f"v_and_b32 v19, 48, v0"); a(f"v_add_u32 v{vO}, v{vO}, v19")
        st(raw(self.f2_grp(sT3) + f"\ns_lshl_b32 s{sT0}, s{sG}, 3\ns_add_u32 s{sT0}, s{sT0}, s{sT3}\ns_add_u32 s{sT0}, s{sT0}, s{sLW}"))
        st(wait_tag("PA")); st(raw(self.flag_txt("s_nop 0") + "\n" + self.flag_txt("s_nop 0", 512)))
        st(wait_vm0()); st(raw(self.flag_txt("s_nop 0", 128) + "\n" + self.flag_txt("s_nop 0", 512 + 128)))
        st(self.stamp("m_X2"))
        st(raw(f"s_lshl_b32 s{sT0}, s{sG}, 2\ns_lshr_b32 s{sT1}, s{sW}, 1\ns_add_u32 s{sT0}, s{sT0}, s{sT1}\ns_lshl_b32 s{sT0}, s{sT0}, 7\ns_add_u32 s{sT3}, s{sT3}, s{sT0}"))
        st(raw(self.poll16_txt("L_p2m", sT3)))
        st(self.stamp("m_Y2"))
        st(S(f"s_lshl_b32 s{sT1}, s{sG}, 12"), S(f"s_add_u32 s{sT1}, s{sT1}, s{sLW}"))
        self.final_reduce(st, vL16, 64, 32, sT1, "L_frm")
        st(S(f"s_lshr_b32 s{sT0}, s{sG}, 1"), S(f"s_lshl_b32 s{sT0}, s{sT0}, 1"), S(f"s_and_b32 s{sT1}, s{sW}, 1"), S(f"s_add_u32 s{sT0}, s{sT0}, s{sT1}"),
           S(f"s_lshl_b32 s{sT0}, s{sT0}, 14"), S(f"s_and_b32 s{sT1}, s{sG}, 1"), S(f"s_lshl_b32 s{sT1}, s{sT1}, 7"), S(f"s_add_u32 s{sT0}, s{sT0}, s{sT1}"),
           S(f"s_lshr_b32 s{sT1}, s{sW}, 1"), S(f"s_lshl_b32 s{sT1}, s{sT1}, 6"), S(f"s_add_u32 s{sT0}, s{sT0}, s{sT1}"),
           S(f"s_lshl_b32 s{sT1}, s{sJ}, 8"), S(f"s_add_u32 s{sT0}, s{sT0}, s{sT1}"))
        st(self.fixfrag(64))
        st(bstore(64, 4, vO, SRD_OUT, f"s{sT0}", flags=o["outf"]))
        st(self.stamp("end"))
        self.prof_dump(st, 40)
        st(raw("s_endpgm"))
        self.tail.append(f"""L_fallback_main:
    s_waitcnt vmcnt(0) lgkmcnt(0)
    s_nop 15
    s_mov_b64 s[{sMODE}:{sMODE+1}], -1
    s_barrier
    s_branch L_restart_main
""")
        self.nbar_main = sum(1 for x in st.ins if x.kind == "barrier")
        if o.get("mskip"):
            st.ins = [x for x in st.ins if x.kind != "dsr" or "ds_read_b32" in x.text]
        return st.finalize(hoist=o["hoist"])

    def maxpass_main(self, QF, vMT):
        t = ["L_maxpass_main:", "s_nop 7",
             "v_and_b32 v176, 15, v0", "v_lshlrev_b32 v176, 8, v176", "v_and_b32 v177, 48, v0", "v_add_u32 v176, v176, v177",
             f"s_lshl_b32 s{sCNT}, s{sW}, 6", f"v_or_b32 v176, s{sCNT}, v176", "v_xor_b32 v177, 64, v176", "v_xor_b32 v178, 0x80, v176", "v_xor_b32 v179, 0xc0, v176",
             f"v_mov_b32 v{vMT[0]}, 0xff800000", f"v_mov_b32 v{vMT[1]}, 0xff800000", f"s_mov_b32 s{sCNT}, 0", "L_maxpass_main_loop:"]
        for k in range(4): t.append(f"buffer_load_dwordx4 v[{128+4*k}:{131+4*k}], v{176+k}, s[{SRD_K}:{SRD_K+3}], s{sCNT} offen")
        t.append("s_waitcnt vmcnt(0)")
        for k in range(4):
            for z in range(2):
                d = 160 + 4 * z; q = QF + 8 * k + 4 * z
                t.append(f"v_mfma_f32_16x16x32_bf16 v[{d}:{d+3}], v[{128+4*k}:{131+4*k}], v[{q}:{q+3}], {'0' if k == 0 else f'v[{d}:{d+3}]'}")
        t.append("s_nop 15")
        for z in range(2):
            for k in (0, 2): t.append(f"v_max3_f32 v{vMT[z]}, v{vMT[z]}, v{160+4*z+k}, v{161+4*z+k}")
        t += [f"s_add_u32 s{sCNT}, s{sCNT}, 4096", f"s_cmp_lt_u32 s{sCNT}, 131072", "s_cbranch_scc1 L_maxpass_main_loop"]
        for z in range(2):
            for sw in (16, 32):
                t += [f"v_mov_b32 v177, v{vMT[z]}", "s_nop 1", f"v_permlane{sw}_swap_b32 v177, v{vMT[z]}", "s_nop 1", f"v_max_f32 v{vMT[z]}, v{vMT[z]}, v177"]
        t += ["s_nop 7", "s_branch L_maxpass_main_ret"]
        return "\n".join(x if x.endswith(":") else "    " + x for x in t) + "\n"

    def helper(self):
        o = self.o
        st = Stream()
        a = lambda s: st(V(s))
        vX, vWQ, vK, vV, vW = 1, 2, 3, 4, 5
        QA, QBr, KA, VA, WA = [6, 7], [8, 9], [10, 11, 12, 13], [14, 15, 16, 17], list(range(18, 26))
        vL16, vFOWN, vP1, vP2, vM, vMT, vRL, vT0, vT1, vQW, vXW, vXR, vA0, vA1 = 26, 27, 28, 29, 30, 31, 32, 34, 35, 36, 37, 38, 39, 40
        vT2 = 33; vFL = 42
        ONES, LACC, CIN = 44, 48, 52
        FR = 64
        Q4 = 96
        S4 = 112
        ACC = 176
        OF = [208, 212]
        PEER = [216 + 4 * k for k in range(6)]
        XR = 240
        st(raw(f"s_setprio {o['hprio']}\nL_restart_helper:"))
        st(comment("helper: DMA source offsets"))
        T = 64
        a(f"v_lshrrev_b32 v{T}, 3, v0"); a(f"v_lshrrev_b32 v{T+1}, 4, v0"); a(f"v_and_b32 v{T+2}, 7, v0"); a(f"v_and_b32 v{T+3}, 15, v0")
        i3, i4, l7, l15 = T, T + 1, T + 2, T + 3
        st(S(f"s_and_b32 s{sT0}, s{sW}, 1"), S(f"s_lshr_b32 s{sT1}, s{sW}, 1"))
        st(S(f"s_lshl_b32 s{sT2}, s{sT0}, 2"))
        a(f"v_or_b32 v{T+4}, s{sT2}, v{i4}"); a(f"v_xor_b32 v{T+4}, v{l7}, v{T+4}")
        st(S(f"s_lshl_b32 s{sT2}, s{sW}, 3"))
        a(f"v_add_u32 v{T+5}, s{sT2}, v{i3}")
        a(f"v_lshlrev_b32 v{vX}, 10, v{T+5}"); a(f"v_lshl_add_u32 v{vX}, v{T+4}, 4, v{vX}")
        sLQ = 59
        st(S(f"s_mul_i32 s{sLQ}, s{sT1}, {WQSH}"), S(f"s_lshl_b32 s{sT2}, s{sT0}, 10"), S(f"s_add_u32 s{sLQ}, s{sLQ}, s{sT2}"))
        a(f"v_lshlrev_b32 v{T+4}, 2, v{i4}"); a(f"v_xor_b32 v{T+4}, v{l15}, v{T+4}")
        st(S(f"s_lshl_b32 s{sT2}, s{sW}, 2"))
        a(f"v_add_u32 v{T+6}, s{sT2}, v{i4}")
        a(f"v_lshlrev_b32 v{vWQ}, 13, v{T+6}"); a(f"v_lshl_add_u32 v{vWQ}, v{T+4}, 4, v{vWQ}")
        if o["rot"] == "full":
            st(S(f"s_lshl_b32 s{sROT}, s{sI}, 1"), S(f"s_add_u32 s{sROT}, s{sROT}, s{sB}"))
        elif o["rot"] in ("g2", "g2i", "g2h"):
            st(S(f"s_add_u32 s{sROT}, s{sI}, s{sB}"), S(f"s_and_b32 s{sROT}, s{sROT}, 1"), S(f"s_lshl_b32 s{sROT}, s{sROT}, 2"))
            if o["rot"] == "g2i":
                st(S(f"s_and_b32 s{sT2}, s{sB}, 2"), S(f"s_cmp_eq_u32 s{sI}, 1"), S(f"s_cselect_b32 s{sT2}, s{sT2}, 0"), S(f"s_add_u32 s{sROT}, s{sROT}, s{sT2}"))
            if o["rot"] == "g2h":
                st(S(f"s_and_b32 s{sT2}, s{sB}, 2"), S(f"s_cmp_lt_u32 s{sI}, 2"), S(f"s_cselect_b32 s{sT2}, s{sT2}, 0"), S(f"s_add_u32 s{sROT}, s{sROT}, s{sT2}"))
        elif o["rot"].startswith("alt"):
            st(S(f"s_add_u32 s{sROT}, s{sI}, s{sB}"), S(f"s_and_b32 s{sROT}, s{sROT}, 1"))
        else:
            st(S(f"s_mov_b32 s{sROT}, 0"))
        st(raw("s_waitcnt lgkmcnt(0)"))
        st(self.srd("X"), self.srd("WQ"))
        def m0set(lds, sb=sLW): return [S(f"s_add_u32 m0, s{sb}, {lds}")]
        sQX, sQW = 100, 101
        sKR = 56
        def dmaQ(s):
            L = []
            first = [S(f"s_add_u32 s{sQX}, s{sROT}, {s}"), S(f"s_and_b32 s{sQX}, s{sQX}, 7"), S(f"s_lshl_b32 s{sQW}, s{sQX}, 19"), S(f"s_lshl_b32 s{sQX}, s{sQX}, 7")]
            if o["rot"].startswith("alt"):
                tab = {"alt": [0, 2, 1, 4, 3, 6, 5, 7], "alt2": [0, 2, 4, 1, 6, 3, 5, 7], "alt3": [0, 2, 1, 3, 4, 6, 5, 7],
                       "alth2": [8, 9, 10, 11, 4, 6, 5, 7], "alth3": [8, 9, 2, 4, 6, 3, 5, 7], "altm2": [0, 10, 1, 11, 4, 14, 5, 15], "alte2": [0, 2, 1, 3, 12, 13, 14, 15],
                       "altm1": [8, 9, 2, 12, 3, 13, 14, 15]}[o["rot"]]
                first = [S(f"s_xor_b32 s{sQX}, s{sROT}, {tab[s]}") if tab[s] < 8 else S(f"s_mov_b32 s{sQX}, {tab[s]-8}")] + first[2:]
            order = [("x", 0), ("w", 0), ("x", 1), ("w", 1), ("x", 2), ("w", 2), ("x", 3), ("w", 3), ("x", 4)]
            for kind, jj in order:
                if kind == "x":
                    L.append(first + m0set(QB[s % 3] + jj * 4096) + [S(f"s_add_u32 s{sT2}, s{sQX}, {jj*32768}"), dma(vX, SRD_X, f"s{sT2}", o["xflag"], tag=f"Q{s}")])
                else:
                    L.append(m0set(QB[s % 3] + XBYTES + jj * 2048, sLQ) + [S(f"s_add_u32 s{sT2}, s{sQW}, {jj*131072}"), dma(vWQ, SRD_WQ, f"s{sT2}", o["wqflag"], tag=f"Q{s}")])
                first = []
            return L
        names = [f"K{i}" for i in range(8)] + [f"V{i}" for i in range(8)] + [f"W{i}" for i in range(8)]
        def dmaI(j):
            L = []
            nm = names[j]; n = int(nm[1:])
            for jj in range(4):
                g = m0set(item_lds(j) + jj * 4096)
                if o["depth"] and j >= o["depth_from"] and j < o["depth_to"]: g = [I(f"s_waitcnt vmcnt({o['depth']-1})", "salu")] + g
                if o.get("dep") and o["dep"][2] <= j < 20:
                    dd = o["dep"][0] if (j >= 16 or o["wstart"] <= j < o["wstart"] + 8) else o["dep"][1]
                    g = [I(f"s_waitcnt vmcnt({dd-1})", "salu")] + g
                def kvoff(x):
                    if not o["krot"]: return [S(f"s_mov_b32 s{sT2}, {x}")]
                    return [S(f"s_add_u32 s{sT2}, s{sKR}, {x}"), S(f"s_and_b32 s{sT2}, s{sT2}, 0x1ffff")]
                if nm[0] == "K":
                    g += kvoff(n*16384 + jj*4096) + [dma(vK, SRD_K, f"s{sT2}", o["kvflag"], tag=nm)]
                elif nm[0] == "V":
                    g += kvoff((n%4)*32768 + jj*8192 + (n//4)*128) + [dma(vV, SRD_V, f"s{sT2}", o["kvflag"], tag=nm)]
                else:
                    p, t = (0, n) if n < 2 else (1 + (n - 2) % 3, (n - 2) // 3)
                    if jj == 0:
                        g = [S(f"s_add_u32 s{sQX}, s{sI}, {p}"), S(f"s_and_b32 s{sQX}, s{sQX}, 3"), S(f"s_lshl_b32 s{sQX}, s{sQX}, 17")] + g
                    g += [S(f"s_add_u32 s{sT2}, s{sQX}, {(64*t + 16*jj)*1024}"), dma(vW, SRD_WO, f"s{sT2}", o["woflag"], tag=nm)]
                L.append(g)
            return L
        barn = [f"Q{s}" for s in range(8)] + names[:17] + ["Z", "Y0", "X1", "Y1", "BF"]
        need = {b: [b] for b in barn[:24]}
        need.update({"Z": [], "W0": ["W0", "W1"], "Y0": ["W2", "W3"], "X1": ["W4"], "Y1": ["W5", "W6", "W7"], "BF": []})
        def wcops(stag):
            if stag:
                pre_ = [S(f"s_lshr_b32 s{sT2}, s{sB}, 1"), S(f"s_lshl_b32 s{sT2}, s{sT2}, 2"), S(f"s_add_u32 s{sT2}, s{sT2}, s{sJ}"), S(f"s_lshl_b32 s{sT2}, s{sT2}, 7")]
            else:
                pre_ = [S(f"s_lshl_b32 s{sT2}, s{sB}, 2"), S(f"s_add_u32 s{sT2}, s{sT2}, s{sJ}"), S(f"s_lshl_b32 s{sT2}, s{sT2}, 6")]
            if o["wint"]: pre_ = pre_ + [S(f"s_lshl_b32 s{sT2}, s{sT2}, 2")]
            return [pre_ + [S(f"s_sub_u32 s{sT2}, s{sT2}, s{sJ}"), S(f"s_lshl_b32 s{sT2}, s{sT2}, {6 if o['wint'] else 8}"), S(f"s_add_u32 s{sT2}, s{sT2}, {4096*k}"),
                            bload(176 + 4 * k, 4, vK, SRD_WO, f"s{sT2}", tag="WC")] for k in range(8 if stag else 4)]
        def avail(nm):
            if nm == "WC": return -1
            if nm[0] == "Q":
                s = int(nm[1:]); return -1 if s < 3 else barn.index(f"Q{s-2}")
            j = names.index(nm)
            if 16 <= j < 20: return barn.index("K0")
            if j >= 20: j -= 4
            if j >= 5:
                return barn.index(names[j - 5]) + 2
            return -1 if j < 3 else barn.index("Q6")
        class Plan:
            def __init__(P, seq, over, stag):
                early = [(names[j], g) for j in range(16, 20) for g in dmaI(j)] if "W0" not in seq else []
                P.ops = []; P.last = {}; P.issued = 0; P.over = over
                wcs = wcops(stag) if o["wcs"] else []; wcon = False
                for nm in seq:
                    if nm == "WC" and o["wcs"]:
                        wcon = 1; continue
                    if wcon and wcs:
                        if (wcon - 1) % o["wcs"] == 0: P.ops.append(("WC", wcs.pop(0), 1))
                        wcon += 1
                    if nm == "W4":
                        while early: P.ops.append(early.pop(0) + (1,))
                    gs = wcops(stag) if nm == "WC" else (dmaQ(int(nm[1:])) if nm[0] == "Q" else dmaI(names.index(nm)))
                    for gi, g in enumerate(gs):
                        P.ops.append((nm, g, 1))
                        if nm in names and names.index(nm) >= o['wstart'] and early and gi in ([1, 3] if o["wper"] == 2 else [0, 1, 2, 3]):
                            P.ops.append(early.pop(0) + (0,))
                for k_, x in enumerate(P.ops): P.last[x[0]] = k_ + 1
            def __call__(P, k):
                ops, lastop = P.ops, P.last
                nxt = barn[k + 1] if k + 1 < len(barn) else None
                tgt = max([lastop[x] for x in need[nxt]] + [0]) if nxt else 0
                must = tgt
                extra = o["lookq"] if (nxt and nxt[0] == "Q") else o["look"]
                extra = o.get("looks", {}).get(nxt, extra)
                while extra > 0 and tgt < len(ops):
                    extra -= ops[tgt][2]; tgt += 1
                if nxt in ("V5", "V6", "V7") and o["holdw"]: tgt = min(tgt, lastop["V7"])
                if nxt == "W0": tgt = lastop[o.get("w0tgt", "W6")]
                if nxt in ("Z", "Y0"): tgt = must
                if nxt == "X1": tgt = len(ops)
                if nxt in P.over: tgt = lastop[P.over[nxt]]
                L = []
                while P.issued < min(tgt, len(ops)) and avail(ops[P.issued][0]) <= k:
                    L.append(ops[P.issued][1]); P.issued += 1
                assert P.issued >= must, (nxt, P.issued, must)
                return L
        Qs = [f"Q{s}" for s in range(8)]
        stag = o["stag"]
        if stag:
            nb, pos = o["stagk"], o["stagpos"]
            rest = names[5:16] + names[20:]
            wburst = names[16:20] if o["wburst"] else []
            over = {"K0": "K4", "K1": "W1", "K2": "W3", "K3": "K5", "K4": "K6"} if o["wburst"] else {"K0": "K4"}
            plan = Plan(Qs + names[:5] + wburst + rest, over, True)
            planB = Plan(Qs[:pos] + (["WC"] if o["wc"] else []) + names[:nb] + Qs[pos:] + names[nb:5] + wburst + rest, over, True)
        else:
            seq = Qs + names[:16] + names[20:]
            if o["wc"]: seq.insert(seq.index(o["wc"]), "WC")
            plan = Plan(seq, {}, False)
        first = plan(-1)
        st(first[:9])
        if o["krot"] == 1: st(S(f"s_lshr_b32 s{sKR}, s2, 4"), S(f"s_add_u32 s{sKR}, s{sKR}, s2"), S(f"s_and_b32 s{sKR}, s{sKR}, 15"), S(f"s_lshl_b32 s{sKR}, s{sKR}, 13"))
        if o["krot"] == 2: st(S(f"s_lshr_b32 s{sKR}, s2, 3"), S(f"s_and_b32 s{sKR}, s{sKR}, 15"), S(f"s_lshl_b32 s{sKR}, s{sKR}, 13"))
        if o["krot"] == 3: st(S(f"s_and_b32 s{sKR}, s2, 7"), S(f"s_lshl_b32 s{sKR}, s{sKR}, 14"))
        st(self.srd("K"), self.srd("V"), self.srd("WO"), self.srd("OX"), self.srd("PX"), self.srd("OUT"))
        st(S(f"s_and_b32 s{sT0}, s{sW}, 1"), S(f"s_lshr_b32 s{sT1}, s{sW}, 1"))
        a(f"v_xor_b32 v{T+4}, v{l15}, v{T+6}"); a(f"v_lshlrev_b32 v{vK}, 8, v{T+6}"); a(f"v_lshl_add_u32 v{vK}, v{T+4}, 4, v{vK}")
        a(f"v_bfe_u32 v{T+4}, v{i3}, 1, 1"); a(f"v_lshlrev_b32 v{T+4}, 2, v{T+4}"); a(f"v_bfe_u32 v{T+7}, v{i3}, 2, 1"); a(f"v_lshl_or_b32 v{T+4}, v{T+7}, 1, v{T+4}")
        a(f"v_xor_b32 v{T+4}, v{l7}, v{T+4}"); a(f"v_lshlrev_b32 v{vV}, 8, v{T+5}"); a(f"v_lshl_add_u32 v{vV}, v{T+4}, 4, v{vV}")
        st(S(f"s_lshl_b32 s{sT2}, s{sT0}, 1"))
        a(f"v_lshl_or_b32 v{T+4}, v{i4}, 2, s{sT2}"); a(f"v_xor_b32 v{T+4}, v{l15}, v{T+4}")
        if o["wint"]:
            a(f"v_lshrrev_b32 v{T+7}, 2, v{T+4}"); a(f"v_and_b32 v{T+4}, 3, v{T+4}"); a(f"v_lshl_or_b32 v{T+4}, v{T+7}, 4, v{T+4}")
        a(f"v_lshlrev_b32 v{vW}, 10, v{T+6}"); a(f"v_lshl_add_u32 v{vW}, v{T+4}, 4, v{vW}")
        st(comment("helper: LDS read addresses"))
        kg, q_ = i4, l15
        r_, c_, k1 = T + 8, T + 9, T + 10
        a(f"v_bfe_u32 v{r_}, v0, 2, 2"); a(f"v_and_b32 v{c_}, 3, v0"); a(f"v_and_b32 v{k1}, 1, v{kg}")
        st(S(f"s_lshl_b32 s{sT2}, s{sT0}, 13"), S(f"s_add_u32 s{sT2}, s{sT2}, 98304"))
        a(f"v_xor_b32 v{T+4}, v{kg}, v{q_}"); a(f"v_lshlrev_b32 v{T+7}, 8, v{q_}"); a(f"v_add_u32 v{T+7}, s{sT2}, v{T+7}")
        a(f"v_lshl_add_u32 v{KA[0]}, v{T+4}, 4, v{T+7}")
        for k in range(1, 4): a(f"v_xor_b32 v{KA[k]}, {64*k}, v{KA[0]}")
        st(S(f"s_lshl_b32 s{sT2}, s{sT0}, 5"))
        a(f"v_lshl_add_u32 v{T+4}, v{kg}, 2, v{r_}"); a(f"v_add_u32 v{T+4}, s{sT2}, v{T+4}")
        a(f"v_lshlrev_b32 v{T+11}, 3, v{c_}"); a(f"v_lshl_add_u32 v{T+11}, v{k1}, 5, v{T+11}")
        a(f"v_lshrrev_b32 v{T+7}, 1, v{r_}"); a(f"v_xor_b32 v{T+7}, s{sT0}, v{T+7}")
        a(f"v_lshl_add_u32 v{T+7}, v{T+7}, 6, v{T+11}"); a(f"v_lshl_add_u32 v{VA[0]}, v{T+4}, 7, v{T+7}")
        for k in range(1, 4): a(f"v_xor_b32 v{VA[k]}, {32*k}, v{VA[0]}")
        st(S(f"s_lshl_b32 s{sT2}, s{sT0}, 1"))
        a(f"v_xor_b32 v{T+7}, s{sT2}, v{r_}"); a(f"v_lshl_add_u32 v{T+7}, v{T+7}, 6, v{T+11}"); a(f"v_lshl_add_u32 v{WA[0]}, v{T+4}, 8, v{T+7}")
        for k in range(1, 8): a(f"v_xor_b32 v{WA[k]}, {32*k}, v{WA[0]}")
        a(f"v_lshlrev_b32 v{vL16}, 4, v0")
        for k in range(4): a(f"v_mov_b32 v{ONES+k}, 0x3f803f80")
        st(first[9:])

        fK, fV, fW = Fam(KA, 98304), Fam(VA), Fam(WA)
        def tr2(fam, k, off0, off1, f):
            p, reg, o0 = fam.at(k, off0, off1 - off0)
            return p + [ds_tr(f, reg, o0), ds_tr(f + 2, reg, o0 + off1 - off0)]
        def r128(fam, k, off, f):
            p, reg, o0 = fam.at(k, off)
            return p + [ds_r128(f, reg, o0)]
        bk = [-1]
        def bar(nm, lds0=False, tags=()):
            bk[0] += 1
            assert barn[bk[0]] == nm
            for x in need[nm] + list(tags): st(wait_tag(x))
            if lds0: st(wait_lds0())
            st(self.stamp("h_pre" + nm)); st(barrier()); st(self.stamp("h_" + nm))
            return plan(bk[0])
        def paced(reads, mfs, dm, ndm=None, post=()):
            reads = list(reads); dm = list(dm)
            n = len(dm) if ndm is None else min(ndm, len(dm))
            for _ in range(min(o["HD"], len(reads))): st(reads.pop(0))
            for i, m in enumerate(mfs):
                k = -(-n // (len(mfs) - i))
                for _ in range(k): st(dm.pop(0))
                n -= k
                st(m)
                if reads: st(reads.pop(0))
                if i < len(post): st(post[i])
            return dm
        st(S(f"s_lshr_b32 s{sT1}, s{sW}, 1"), S(f"s_lshl_b32 s{sT1}, s{sT1}, 10"))
        a(f"v_add_u32 v{vXR}, s{sT1}, v{vL16}")
        if stag:
            st(S(f"s_bitcmp1_b32 s{sB}, 0"), raw("s_cbranch_scc1 L_typeB"))
            sb = Stream()
            sb(planB(-1)); sb(raw("L_typeB:"))
            for s in range(8):
                sb(wait_tag(f"Q{s}")); sb(barrier()); sb(planB(s))
            assert planB.issued == planB.last["K4"]
            txt = sb.finalize()
            self.tail.insert(0, txt[txt.index("L_typeB:"):] + "    s_branch L_join\n")
        for s in range(8):
            st(bar(f"Q{s}"))
        if stag:
            assert plan.issued == plan.last["K4"]
            st(raw("L_join:"))
        def maxops(i):
            d = S4 + 8 * i
            if i == 0:
                return [V(f"v_max3_f32 v{vM}, v{d}, v{d+1}, v{d+2}"), V(f"v_max3_f32 v{vM}, v{vM}, v{d+3}, v{d+4}"), V(f"v_max3_f32 v{vM}, v{vM}, v{d+5}, v{d+6}"), V(f"v_max_f32 v{vM}, v{vM}, v{d+7}")]
            return [V(f"v_max3_f32 v{vM}, v{vM}, v{d+k}, v{d+k+1}") for k in (0, 2, 4, 6)]
        def soft(i):
            d = S4 + 8 * i
            L = [V(f"v_sub_f32 v{d+k}, v{d+k}, v{vM}") for k in range(8)] + [V(f"v_exp_f32 v{d+k}, v{d+k}") for k in range(8)]
            L += [V(f"v_cvt_pk_bf16_f32 v{d+k}, v{d+2*k}, v{d+2*k+1}") for k in range(4)]
            return L
        def rdK(i): return [r128(fK, k >> 1, item_lds(i) + (k & 1) * 4096, FR + 4 * k) for k in range(8)]
        def mfK(i): return [mfma16(S4 + 8 * i + 4 * (k & 1), FR + 4 * k, Q4 + 4 * (k >> 1), (S4 + 8 * i + 4 * (k & 1)) if k >> 1 else None) for k in range(8)]
        def rdV(n): return [tr2(fV, k & 3, item_lds(8 + n) + 8192 * (k >> 2), item_lds(8 + n) + 8192 * (k >> 2) + 2048, FR + 4 * k) for k in range(8)]
        def mfV(n):
            vi = n % 4
            return [mfma16(ACC + 4 * (k & 3), FR + 4 * k, S4 + 8 * (2 * vi + (k >> 2)), None if (vi == 0 and k < 4) else ACC + 4 * (k & 3)) for k in range(8)]
        def rdW(it): return [tr2(fW, k, item_lds(16 + it), item_lds(16 + it) + 4096, FR + 4 * k) for k in range(8)]
        def mfW(it): return [mfma16(ACC + 4 * k, FR + 4 * k, OF[it] if it < 2 else PEER[it - 2], None if it == 0 else ACC + 4 * k) for k in range(8)]
        def lag(mfs, reads, dm=(), fill=()):
            dm = list(dm); fill = list(fill)
            for k in range(8):
                if mfs: st(mfs[k])
                if reads and not (o.get("halfrd") and k & 1): st(reads[k])
                elif reads: st([x for x in reads[k] if x.kind != "dsr"])
                n = -(-len(fill) // (8 - k)); st(fill[:n]); fill = fill[n:]
                n = -(-len(dm) // (8 - k)); st(dm[:n])
                if not mfs and not n: st(raw("s_nop 7"))
                dm = dm[n:]
        for i in range(8):
            dm = bar(f"K{i}")
            if i == 0:
                for k in range(4): st(ds_r128(Q4 + 4 * k, vXR, SCR + k * 2048))
            lag(mfK(i - 1) if i else None, rdK(i), dm, maxops(i - 2) if i >= 2 else [])
            if i == 3: st(self.nonce_issue())
        st(S(f"s_lshl_b32 s{sT1}, s{sW}, 11"))
        a(f"v_add_u32 v{vXW}, s{sT1}, v{vL16}"); a(f"v_xor_b32 v{vXR}, 2048, v{vXW}")
        def combine(t):
            L = [ds_r128(XR, vXR, SCR), ds_r128(XR + 4, vXR, SCR + 1024)]
            for k in range(8):
                L.append(V(f"v_mul_f32 v{XR+8+k}, v{XR+8+k}, v{vA0}"))
            for k in range(8):
                L.append(V(f"v_fmac_f32 v{XR+8+k}, v{XR+k}, v{vA1}"))
            for k in range(4):
                L.append(V(f"v_cvt_pk_bf16_f32 v{OF[t]+k}, v{XR+8+2*k}, v{XR+8+2*k+1}"))
            L += [[S(f"s_mul_i32 s{sT2}, s{sO}, 40960"), S(f"s_add_u32 s{sT2}, s{sT2}, s{sLW}"), S(f"s_add_u32 s{sT2}, s{sT2}, {t*20480 + 16384}"),
                  bstore(OF[t], 4, vL16, SRD_OX, f"s{sT2}", flags=o["stf"], tag=f"O{t}")]]
            return L
        def send(t):
            L = [ds_w128(vXW, ACC + 8, SCR), ds_w128(vXW, ACC + 12, SCR + 1024)]
            L += [V(f"v_mov_b32 v{XR+8+k}, v{ACC+k}") for k in range(8)]
            return L
        for n in range(8):
            nm = f"V{n}"
            if n == 1: st(self.nonce_get("L_nonce"))
            dm = bar(nm, lds0=(n == 5), tags=(["O0"] if o["X0"] == nm else []))
            if o["X0"] == nm: st(self.flag_set("L_f10", self.f1_own(0)))
            fill = []
            if n == 0:
                lag(mfK(7), rdV(0), dm, maxops(6))
                st(maxops(7))
                st(V(f"v_mov_b32 v{vT0}, v{vM}"), V(f"v_permlane16_swap_b32 v{vT0}, v{vM}"), V(f"v_max_f32 v{vM}, v{vM}, v{vT0}"),
                   V(f"v_mov_b32 v{vT0}, v{vM}"), V(f"v_permlane32_swap_b32 v{vT0}, v{vM}"), V(f"v_max_f32 v{vM}, v{vM}, v{vT0}"))
                st(soft(0))
                continue
            if n <= 4:
                vi = n - 1
                fill = soft(2 * vi + 1) + (soft(2 * vi + 2) if vi < 3 else [None] * 20)
            if n == 4:
                st(self.bad_read(vT0, vT1)); st(self.bad_check(vT1, "L_fallback_helper"))
            if n == 5:
                c = combine(0)
                st(V(f"v_lshrrev_b32 v{vT0}, 2, v{vXR}"), ds_r32(vA0, vT0, SCR_ML), ds_r32(vA1, vT0, SCR_ML + 256), c[:2])
                fill = [V(f"v_max_f32 v{vT0}, v{vM}, v{vA0}"),
                        V(f"v_sub_f32 v{vT1}, v{vA0}, v{vT0}"), V(f"v_exp_f32 v{vT1}, v{vT1}"),
                        V(f"v_sub_f32 v{vT0}, v{vM}, v{vT0}"), V(f"v_exp_f32 v{vT0}, v{vT0}"),
                        V(f"v_mul_f32 v{vRL}, v{vT1}, v{vA1}"), V(f"v_fmac_f32 v{vRL}, v{vT0}, v{LACC}"), V(f"v_rcp_f32 v{vRL}, v{vRL}"),
                        V(f"v_mul_f32 v{vA0}, v{vT0}, v{vRL}"), V(f"v_mul_f32 v{vA1}, v{vT1}, v{vRL}")] + c[2:]
            lag(mfV(n - 1), rdV(n), dm, fill)
            if n <= 4:
                st([mfma16(LACC, ONES, S4 + 8 * (2 * vi + u), None if (vi == 0 and u == 0) else LACC) for u in range(2)])
            if n == 4:
                st(send(0))
                a(f"v_lshrrev_b32 v{vT0}, 2, v{vXW}")
                st(ds_w32(vT0, vM, SCR_ML), ds_w32(vT0, LACC, SCR_ML + 256))
        def peer_loads(t):
            L = []
            for p in range(3):
                L += [S(f"s_add_u32 s{sT0}, s{sO}, {p+1}"), S(f"s_and_b32 s{sT0}, s{sT0}, 3"), S(f"s_mul_i32 s{sT0}, s{sT0}, 40960"),
                      S(f"s_add_u32 s{sT0}, s{sT0}, s{sLW}"), S(f"s_add_u32 s{sT0}, s{sT0}, {t*20480 + 16384}"),
                      bload(PEER[3 * t + p], 4, vL16, SRD_OX, f"s{sT0}", flags=o["ldf"])]
            return L
        assert o["vflag"] and o["X0"] != "Z"
        dm = bar("W0", tags=(["O0"] if o["X0"] == "W0" else []))
        st(self.early_issue("L_e10"))
        if o["X0"] == "W0": st(self.flag_set("L_f10", self.f1_own(0)))
        st(mfV(7)); st(send(1))
        assert not dm
        dm = bar("Z", lds0=True)
        assert not dm
        st(combine(1))
        lag(None, rdW(0))
        st(self.poll1("L_p10", 0, early=(2 if o["X0"] == "W0" else 1)))
        dm = bar("Y0")
        st(peer_loads(0))
        seq_ = [(mfW(k), k + 1) for k in range(7)]
        na, nb_ = o["hx"]
        for k in range(na):
            lag(mfW(k), rdW(k + 1), dm if k == 0 else ())
        dm = bar("X1", tags=["O1"])
        st(self.flag_set("L_f11", self.f1_own(1)))
        for k in range(na, nb_): lag(mfW(k), rdW(k + 1))
        st(self.poll1("L_p11", 1))
        dm = bar("Y1")
        st(peer_loads(1))
        for k in range(nb_, 7): lag(mfW(k), rdW(k + 1))
        st(mfW(7))
        st(S(f"s_lshl_b32 s{sT1}, s{sW}, 12"))
        a(f"v_add_u32 v{vXW}, s{sT1}, v{vL16}"); a(f"v_xor_b32 v{vXR}, 4096, v{vXW}")
        for k in range(4): st(ds_w128(vXW, ACC + 16 + 4 * k, SCR + 1024 * k))
        bar("BF", lds0=True)
        assert plan.issued == len(plan.ops)
        for k in range(4): st(ds_r128(XR + 4 * k, vXR, SCR + 1024 * k))
        for k in range(16): a(f"v_add_f32 v{ACC+k}, v{ACC+k}, v{XR+k}")
        for k in range(8): a(f"v_cvt_pk_bf16_f32 v{FR+k}, v{ACC+2*k}, v{ACC+2*k+1}")
        if o["sent"]:
            for k in range(8): a(f"v_min_u32 v{FR+k}, -2, v{FR+k}")
        st(S(f"s_mul_i32 s{sT3}, s{sG}, 40960"), S(f"s_lshl_b32 s{sT0}, s{sW}, 11"), S(f"s_add_u32 s{sT3}, s{sT3}, s{sT0}"), S(f"s_add_u32 s{sT3}, s{sT3}, 32768"))
        st(bstore(FR, 4, vL16, SRD_PX, f"s{sT3}", flags=self.o["stf"]), bstore(FR + 4, 4, vL16, SRD_PX, f"s{sT3}", off=1024, flags=self.o["stf"]))
        st(raw(self.f2_grp(sT3) + f"\ns_lshl_b32 s{sT0}, s{sG}, 3\ns_add_u32 s{sT0}, s{sT0}, s{sT3}\ns_add_u32 s{sT0}, s{sT0}, s{sLW}"))
        st(wait_vm0()); st(raw(self.flag_txt("s_nop 0", 256) + "\n" + self.flag_txt("s_nop 0", 512 + 256)))
        st(S(f"s_cmp_eq_u32 s{sW}, 1"), raw("s_cbranch_scc0 L_hend"))
        st(raw(f"s_lshl_b32 s{sT0}, s{sG}, 9\ns_add_u32 s{sT3}, s{sT3}, s{sT0}\ns_add_u32 s{sT3}, s{sT3}, 256"))
        st(raw(self.poll16_txt("L_p2h", sT3)))
        st(S(f"s_lshl_b32 s{sT1}, s{sG}, 10"), S(f"s_add_u32 s{sT1}, s{sT1}, 32768"))
        a(f"v_and_b32 v{vM}, 15, v0"); a(f"v_lshlrev_b32 v{vM}, 10, v{vM}"); a(f"v_lshrrev_b32 v{vRL}, 4, v0"); a(f"v_lshl_add_u32 v{vM}, v{vRL}, 3, v{vM}")
        self.final_reduce(st, vL16, 64, 112, sT1, "L_frh")
        st(S(f"s_lshr_b32 s{sT0}, s{sG}, 2"), S(f"s_lshl_b32 s{sT0}, s{sT0}, 14"), S(f"s_add_u32 s{sT0}, s{sT0}, {128*1024}"),
           S(f"s_and_b32 s{sT1}, s{sG}, 3"), S(f"s_lshl_b32 s{sT1}, s{sT1}, {8 if o['wint'] else 6}"), S(f"s_add_u32 s{sT0}, s{sT0}, s{sT1}"),
           S(f"s_lshl_b32 s{sT1}, s{sJ}, {6 if o['wint'] else 8}"), S(f"s_add_u32 s{sT0}, s{sT0}, s{sT1}"))
        st(bstore(64, 2, vM, SRD_OUT, f"s{sT0}", flags=o["outf"]), bstore(66, 2, vM, SRD_OUT, f"s{sT0}", off=32, flags=o["outf"]))
        st(raw("L_hend:"))
        st(self.stamp("end"))
        self.prof_dump(st, 40, "h")
        st(raw("s_endpgm"))
        self.tail.append(f"""L_fallback_helper:
    s_waitcnt vmcnt(0) lgkmcnt(0)
    s_nop 15
    s_mov_b64 s[{sMODE}:{sMODE+1}], -1
    s_barrier
    s_branch L_restart_helper
""")
        self.nbar_helper = sum(1 for x in st.ins if x.kind == "barrier")
        if o.get("hskip"):
            kill = {1: ("mfma16",), 2: ("dsr",), 3: ("mfma16", "dsr")}[o["hskip"]]
            st.ins = [x for x in st.ins if x.kind not in kill or "ds_read_b32" in x.text]
        return st.finalize()

    def build(self):
        s = HEADER
        s += "; Generated by gen/gen.py (hand-written generator): fused Q-projection + attention + output projection.\n"
        s += "; @launch grid=(256,1,1) block=(512,1,1) lds=163840\n"
        s += '.amdgcn_target "amdgcn-amd-amdhsa--gfx950"\n.text\n'
        s += f".globl {KN}\n.p2align 8\n.type {KN},@function\n{KN}:\n"
        s += self.prologue()
        s += self.helper()
        s += self.main()
        assert self.nbar_main == self.nbar_helper, (self.nbar_main, self.nbar_helper)
        s += "".join(self.tail)
        s += "L_end:\n    s_endpgm\n"
        s += f""".section .rodata,"a"
.p2align 6
.amdhsa_kernel {KN}
  .amdhsa_next_free_vgpr 256
  .amdhsa_next_free_sgpr 102
  .amdhsa_accum_offset 256
  .amdhsa_group_segment_fixed_size 0
  .amdhsa_kernarg_size 64
  .amdhsa_user_sgpr_count 2
  .amdhsa_user_sgpr_kernarg_segment_ptr 1
  .amdhsa_system_sgpr_workgroup_id_x 1
.end_amdhsa_kernel
"""
        return s

if __name__ == "__main__":
    out = sys.argv[1] if len(sys.argv) > 1 else "standalone__mha_block_cached__near_ridge.s"
    open(out, "w").write(Gen().build())
    print("wrote", out)
```
